```python
import torch

def _softmax(x, axis=-1):
    return torch.softmax(x, dim=axis)
def _gelu(x):
    return torch.nn.functional.gelu(x, approximate="tanh")
def _silu(x):
    return torch.nn.functional.silu(x)
def _sigmoid(x):
    return torch.sigmoid(x)
def _layernorm(x, axis=-1, eps=1e-5):
    m = x.mean(dim=axis, keepdim=True)
    v = x.var(dim=axis, keepdim=True, unbiased=False)
    return (x - m) / torch.sqrt(v + eps)
def _scatter_add(tgt, idx, src, axis=0):
    return tgt.clone().index_add_(axis, idx, src)
def _segment_sum(src, seg, n):
    out = torch.zeros((n,) + src.shape[1:], dtype=src.dtype)
    return out.index_add_(0, seg, src)
def _pad(x, pw):
    flat = tuple(v for pair in reversed(pw) for v in pair)
    return torch.nn.functional.pad(x, flat)

kernel_name = 'interleave_layers__ssm_conv_s4d__grouped_kv_mqa__prompt'

def setup_inputs():

    _w = (lambda a: (lambda t: t.to(torch.bfloat16) if t.is_floating_point() else t)(torch.as_tensor(a)))
    def _A_setup():
        Bsz, L, D, N = 1, 2048, 640, 128
        return {
            "u": _w((lambda *s: torch.randn(*s, dtype=torch.bfloat16) * 0.05)(Bsz, L, D)),
            "log_A_real": _w((lambda *s: torch.randn(*s, dtype=torch.bfloat16) * 3.2)(D, N) * 0.5),
            "A_imag": _w((lambda *s: torch.randn(*s, dtype=torch.bfloat16) * 0.05)(D, N) * 3.14),
            "C_real": _w((lambda *s: torch.randn(*s, dtype=torch.bfloat16) * 0.05)(D, N) / N ** 0.5),
            "C_imag": _w((lambda *s: torch.randn(*s, dtype=torch.bfloat16) * 0.05)(D, N) / N ** 0.5),
            "log_dt": _w((lambda *s: torch.randn(*s, dtype=torch.bfloat16) * 0.05)(D) * 0.5 - 4.0),
            "D_skip": _w((lambda *s: torch.randn(*s, dtype=torch.bfloat16) * 0.05)(D)),
        }
    _A_in = _A_setup()

    def _B_setup():
        B, S, D, H = 1, 2048, 640, 32
        Dh = D // H
        return {
            "x": _w((lambda *s: torch.randn(*s, dtype=torch.bfloat16) * 0.05)(B, S, D)),
            "wq": _w((lambda *s: torch.randn(*s, dtype=torch.bfloat16) * 0.05)(D, H * Dh)),
            "wk": _w((lambda *s: torch.randn(*s, dtype=torch.bfloat16) * 0.05)(D, Dh)),
            "wv": _w((lambda *s: torch.randn(*s, dtype=torch.bfloat16) * 0.05)(D, Dh)),
            "wo": _w((lambda *s: torch.randn(*s, dtype=torch.bfloat16) * 0.05)(H * Dh, D)),
        }
    _B_in = _B_setup()

    return {
        "A_u": _A_in["u"],
        "A_log_A_real": _A_in["log_A_real"],
        "A_A_imag": _A_in["A_imag"],
        "A_C_real": _A_in["C_real"],
        "A_C_imag": _A_in["C_imag"],
        "A_log_dt": _A_in["log_dt"],
        "A_D_skip": _A_in["D_skip"],
        "B_x": _B_in["x"],
        "B_wq": _B_in["wq"],
        "B_wk": _B_in["wk"],
        "B_wv": _B_in["wv"],
        "B_wo": _B_in["wo"],
    }

def reference(A_u, A_log_A_real, A_A_imag, A_C_real, A_C_imag, A_log_dt, A_D_skip, B_x, B_wq, B_wk, B_wv, B_wo):
    def _A_ref(u, log_A_real, A_imag, C_real, C_imag, log_dt, D_skip):
        L = u.shape[1]
        dt = torch.exp(log_dt)
        A = -torch.exp(log_A_real) + 1j * A_imag
        C = (C_real + 1j * C_imag) * dt[:, None]
        pos = (lambda x, dt: x.to(dt))(torch.arange(L), log_dt.dtype)
        P = torch.exp((A * dt[:, None])[:, :, None] * pos[None, None, :])
        K = 2.0 * torch.einsum("dn,dnl->dl", C, P).real
        L2 = 2 * L
        u_t = (lambda x, *d: x.permute(*d))(u, 0, 2, 1)
        Kf = (lambda x, *a, **k: torch.fft.rfft(x.float(), *a, **k))(K, L2)
        Uf = (lambda x, *a, **k: torch.fft.rfft(x.float(), *a, **k))(u_t, L2)
        y = (lambda x, *a, **k: torch.fft.irfft(x, *a, **k).to(torch.bfloat16))(Uf * Kf[None, :, :], L2)[:, :, :L]
        y = (lambda x, *d: x.permute(*d))(y, 0, 2, 1)
        return y + u * D_skip[None, None, :]

    def _B_ref(x, wq, wk, wv, wo):
        B, S, D = x.shape
        H = 32
        Dh = D // H
        q = (lambda x, *d: x.permute(*d))((x @ wq).reshape(B, S, H, Dh), 0, 2, 1, 3)
        k = x @ wk
        v = x @ wv
        scores = torch.einsum("bhqd,bkd->bhqk", q, k) * (Dh ** -0.5)
        p = _softmax(scores, axis=-1)
        o = torch.einsum("bhqk,bkd->bhqd", p, v)
        return (lambda x, *d: x.permute(*d))(o, 0, 2, 1, 3).reshape(B, S, H * Dh) @ wo

    x = A_u
    x = x + _A_ref(_layernorm(x, axis=-1), A_log_A_real, A_A_imag, A_C_real, A_C_imag, A_log_dt, A_D_skip)
    x = x + _B_ref(_layernorm(x, axis=-1), B_wq, B_wk, B_wv, B_wo)
    x = x + _A_ref(_layernorm(x, axis=-1), A_log_A_real, A_A_imag, A_C_real, A_C_imag, A_log_dt, A_D_skip)
    x = x + _B_ref(_layernorm(x, axis=-1), B_wq, B_wk, B_wv, B_wo)
    return x
```

```python
from fw import Prog
L = 2048; D = 640; H = 32; DH = 20
WS_WT = 0x000000
WS_WOT = 0x100000
WS_KREV = 0x200000
KREV_STRIDE = 4160
WS_XTA = 0x500000
WS_XTB = 0x800000
WS_STATS = 0xB00000
WS_Q = 0xC00000
WS_KV = 0xF00000
KV_KHI = 65536
KV_VT = 65536 + 16384
KV_SIZE = 163840
WS_O = 0x1000000
WS_XR = 0x1300000
XSZ = L * D * 2
LOG2E = 0x3fb8aa3b
INV2PI = 0x3e22f983

def srd(p, s, base, off, size):
    p(f"s_add_u32 s{s}, s{base}, {off}")
    p(f"s_addc_u32 s{s+1}, s{base+1}, 0")
    p(f"s_mov_b32 s{s+2}, {size}")
    p(f"s_mov_b32 s{s+3}, 0x00020000")

def header(p, name):
    p.raw(f".globl {name}\n.p2align 8\n.type {name},@function\n{name}:")

def kd(name, vgpr, sgpr=102):
    acc = (vgpr + 3) // 4 * 4
    return f""".section .rodata,"a"
.p2align 6
.amdhsa_kernel {name}
  .amdhsa_next_free_vgpr {vgpr}
  .amdhsa_next_free_sgpr {sgpr}
  .amdhsa_accum_offset {acc}
  .amdhsa_group_segment_fixed_size 0
  .amdhsa_kernarg_size 120
  .amdhsa_user_sgpr_count 2
  .amdhsa_user_sgpr_kernarg_segment_ptr 1
  .amdhsa_system_sgpr_workgroup_id_x 1
.end_amdhsa_kernel
.text
"""

def load_ptrs(p):
    p("s_load_dwordx16 s[16:31], s[0:1], 0")
    p("s_load_dwordx8 s[32:39], s[0:1], 64")
    p("s_load_dwordx2 s[40:41], s[0:1], 112")
    p("s_load_dwordx2 s[42:43], s[0:1], 96")

def bf16r(p, dst, src):
    p(f"v_cvt_pk_bf16_f32 {dst}, {src}, {src}")
    p(f"v_lshlrev_b32 {dst}, 16, {dst}")

def row16_sum(p, regs):
    for sh in (1, 2, 4, 8):
        for r in regs:
            p(f"v_add_f32_dpp {r}, {r}, {r} row_ror:{sh} row_mask:0xf bank_mask:0xf")
        if len(regs) < 3:
            p("s_nop 1")

def ln_row_params(p, vsum, vsq, vm, vrs, t0, t1):
    p(f"v_mul_f32 {vm}, 0x3acccccd, {vsum}")
    p(f"v_mul_f32 {t0}, 0x3acccccd, {vsq}")
    p(f"v_fma_f32 {t0}, -{vm}, {vm}, {t0}")
    p(f"v_max_f32 {t0}, 0, {t0}")
    bf16r(p, t0, t0)
    p(f"v_add_f32 {t0}, 0x3727c5ac, {t0}")
    bf16r(p, t0, t0)
    p(f"v_sqrt_f32 {t0}, {t0}")
    bf16r(p, vm, vm)
    bf16r(p, t0, t0)
    p(f"v_rcp_f32 {vrs}, {t0}")
    p("s_nop 0")
```

```python
import re

def regs_of(tok):
    tok = tok.strip()
    out = set()
    m = re.fullmatch(r'(-?)(?:abs\()?([vas])\[(\d+):(\d+)\]\)?', tok)
    if m:
        for i in range(int(m.group(3)), int(m.group(4)) + 1):
            out.add((m.group(2), i))
        return out
    m = re.fullmatch(r'(-?)(?:abs\()?([vas])(\d+)\)?', tok)
    if m:
        out.add((m.group(2), int(m.group(3))))
        return out
    if tok in ('vcc', 'exec', 'm0', 'scc'):
        out.add((tok, 0))
    if tok in ('vcc_lo', 'vcc_hi'):
        out.add(('vcc', 0))
    if tok in ('exec_lo', 'exec_hi'):
        out.add(('exec', 0))
    return out

TRANS = ('v_exp_f32', 'v_log_f32', 'v_rcp_f32', 'v_rsq_f32', 'v_sqrt_f32', 'v_sin_f32', 'v_cos_f32')

class Ins:
    def __init__(self, text):
        self.text = text
        t = text.split(';')[0].strip()
        self.op = t.split()[0] if t else ''
        rest = t[len(self.op):].strip()
        ops = []
        depth = 0; cur = ''
        for ch in rest:
            if ch == '[': depth += 1
            if ch == ']': depth -= 1
            if ch == ',' and depth == 0:
                ops.append(cur.strip()); cur = ''
            else:
                cur += ch
        if cur.strip(): ops.append(cur.strip())
        clean = []
        for o in ops:
            clean.append(o.split()[0] if o else o)
        self.ops = clean
        self.mods = rest
        self.w = set(); self.r = set()
        op = self.op
        self.kind = 'other'
        R = lambda i: regs_of(clean[i]) if i < len(clean) else set()
        allr = lambda a: set().union(*[R(i) for i in range(a, len(clean))]) if len(clean) > a else set()
        if op.startswith('v_mfma'):
            self.kind = 'mfma'
            self.w = R(0); self.r = allr(1)
            self.srcc = R(3); self.srcab = R(1) | R(2)
            if '32x32x16' in op or '32x32x8' in op: self.passes = 8
            elif '16x16x32' in op or '16x16x16' in op: self.passes = 4
            elif '32x32x2' in op: self.passes = 16
            elif '16x16x4' in op: self.passes = 8
            else: raise Exception('unknown mfma ' + op)
        elif op.startswith('v_'):
            self.kind = 'valu'
            self.w = R(0); self.r = allr(1)
            if op.startswith('v_fmac') or op.startswith('v_pk_fmac'):
                self.r |= R(0)
            if 'permlane' in op and 'swap' in op:
                self.w = R(0) | R(1); self.r = R(0) | R(1)
            if op.startswith('v_add_co') or op.startswith('v_addc_co') or op.startswith('v_sub_co'):
                self.w = R(0) | R(1); self.r = allr(2)
            if op in TRANS or op.replace('_e32', '').replace('_e64', '') in TRANS:
                self.kind = 'trans'
            if op.startswith('v_cmpx'):
                self.w |= {('exec', 0)}
        elif op.startswith('ds_read') or op.startswith('ds_bpermute') or op.startswith('ds_swizzle'):
            self.kind = 'ds'; self.w = R(0); self.r = allr(1)
        elif op.startswith('ds_'):
            self.kind = 'ds'; self.r = allr(0)
        elif op.startswith('buffer_load') or op.startswith('global_load'):
            self.kind = 'vmem'
            if ' lds' in rest:
                self.r = allr(0) | {('m0', 0)}
            else:
                self.w = R(0); self.r = allr(1)
        elif op.startswith('buffer_store') or op.startswith('global_store') or op.startswith('buffer_atomic') or op.startswith('global_atomic'):
            self.kind = 'vmem'; self.r = allr(0)
            self.store_data = R(0) if op.startswith('buffer') else R(1)
            self.wide = ('x4' in op or 'x3' in op)
        elif op.startswith('s_'):
            self.kind = 'salu'
            if op.startswith('s_cmp') or op.startswith('s_cbranch') or op in ('s_branch', 's_barrier', 's_waitcnt', 's_nop', 's_endpgm', 's_setprio', 's_sleep'):
                self.r = allr(0)
            else:
                self.w = R(0); self.r = allr(1)
                if 'saveexec' in op:
                    self.w |= {('exec', 0)}
        self.states = 1
        mo = re.search(r'offset:(\d+)', rest)
        if mo and (op.startswith('buffer_')) and int(mo.group(1)) > 4095: raise Exception('offset too large: ' + text)
        if mo and (op.startswith('ds_')) and int(mo.group(1)) > 65535: raise Exception('offset too large: ' + text)
        if op == 's_nop':
            self.states = int(clean[0], 0) + 1

class Prog:
    def __init__(self):
        self.lines = []
    def __call__(self, text):
        for ln in text.strip().split('\n'):
            ln = ln.strip()
            if not ln: continue
            if ln.startswith(';'):
                self.lines.append(('c', ln)); continue
            if ln.endswith(':') and ' ' not in ln:
                self.lines.append(('l', ln[:-1])); continue
            self.lines.append(('i', Ins(ln)))
    def raw(self, text):
        self.lines.append(('c', text))
    def render(self):
        out = []
        for k, v in self.lines:
            if k == 'i': out.append('    ' + v.text)
            elif k == 'l': out.append(v + ':')
            else: out.append(v)
        return '\n'.join(out) + '\n'

    def check(self, verbose=True):
        seq = []
        labels = {}
        items = [x for x in self.lines if x[0] != 'c']
        for idx, (k, v) in enumerate(items):
            if k == 'l': labels[v] = idx
        i = 0
        replayed = set()
        while i < len(items):
            k, v = items[i]
            if k == 'i':
                seq.append(v)
                if v.op.startswith('s_cbranch') or v.op == 's_branch':
                    tgt = v.ops[0]
                    if tgt in labels and labels[tgt] < i and i not in replayed:
                        replayed.add(i)
                        i = labels[tgt]
                        continue
                if v.op == 's_endpgm':
                    seq.append(None)
            i += 1
        problems = []
        n = len(seq)
        for j, c in enumerate(seq):
            if c is None: continue
            dist = 0
            for b in range(j - 1, max(-1, j - 40), -1):
                p = seq[b]
                if p is None: break
                need = 0; why = ''
                vw = {x for x in p.w if x[0] in 'va'}
                sw = {x for x in p.w if x[0] == 's' or x[0] == 'vcc'}
                if p.kind in ('valu', 'trans'):
                    if c.kind == 'mfma' and (vw & c.r): need = max(need, 2); why = 'valu->mfma'
                    if p.kind == 'trans' and c.kind in ('valu', 'ds', 'vmem') and (vw & c.r) and c.kind == 'valu': need = max(need, 1); why = 'trans->valu'
                    if 'permlane' in c.op and (vw & c.r): need = max(need, 2); why = 'valu->permlane'
                    if ('dpp' in c.mods or 'row_' in c.mods) and (vw & c.r): need = max(need, 2); why = 'valu->dpp'
                    if (c.op.startswith('v_readlane') or c.op.startswith('v_readfirstlane')) and (vw & c.r): need = max(need, 1); why = 'valu->readlane'
                    if c.kind == 'vmem' and (sw & c.r): need = max(need, 5); why = 'valu sgpr->vmem'
                    if c.kind in ('valu', 'trans') and (sw & c.r): need = max(need, 2); why = 'valu sgpr->valu'
                    if ('exec', 0) in p.w and c.kind == 'mfma': need = max(need, 4); why = 'valu exec->mfma'
                if p.kind == 'mfma':
                    P = p.passes
                    tbl_ab = {2: 5, 4: 8, 8: 12, 16: 20}
                    if P == 16 and '_f32' in p.op and 'x2_f32' in p.op: tbl_ab = {16: 18}
                    if c.kind == 'mfma':
                        if p.w & c.srcab: need = max(need, tbl_ab[P]); why = 'mfma->mfma srcAB'
                        if p.w & c.srcc:
                            if p.w == c.srcc and p.passes == c.passes: pass
                            else: need = max(need, {2: 4, 4: 6, 8: 10, 16: 18}[P]); why = 'mfma->mfma srcC overlap'
                    elif c.kind in ('valu', 'trans', 'vmem', 'ds'):
                        if p.w & (c.r | c.w): need = max(need, tbl_ab[P]); why = 'mfma->valu/mem'
                        if c.kind in ('valu', 'trans') and (p.srcc & c.w) and not (p.w & c.w):
                            need = max(need, {2: 1, 4: 3, 8: 7, 16: 15}[P]); why = 'mfma srcC WAR'
                if p.kind == 'vmem' and getattr(p, 'wide', False):
                    if c.kind in ('valu', 'trans', 'mfma') and (p.store_data & c.w): need = max(need, 2); why = 'store data WAR'
                    elif (p.store_data & c.w): need = max(need, 1); why = 'store data WAR'
                if p.kind == 'salu' and ('m0', 0) in p.w and c.kind == 'vmem' and ('m0', 0) in c.r:
                    need = max(need, 1); why = 'm0->ldsdma'
                if need > dist:
                    problems.append((why, need, dist, p.text, c.text))
                dist += p.states
                if dist > 24: break
        if verbose:
            for pr in problems[:40]:
                print('HAZARD', pr)
        return problems
```

```python
from common import *
import struct, math

def f2u(x): return struct.unpack('<I', struct.pack('<f', x))[0]

def gen_attn(p):
    name = "attn_kernel"
    header(p, name)
    NWG = 256
    C = f2u((20 ** -0.5) * math.log2(math.e))
    p(f"s_cmp_ge_u32 s2, {NWG}")
    p("s_cbranch_scc1 attn_end")
    load_ptrs(p)
    p("v_lshrrev_b32 v2, 6, v0")
    p("v_and_b32 v1, 63, v0")
    p("v_and_b32 v3, 31, v0")
    p("v_readfirstlane_b32 s3, v2")
    p("v_bfe_u32 v4, v0, 5, 1")
    p("s_waitcnt lgkmcnt(0)")
    srd(p, 44, 40, WS_Q, XSZ)
    srd(p, 48, 40, WS_KV, KV_SIZE)
    srd(p, 52, 40, WS_O, XSZ)
    p("s_lshl_b32 s4, s2, 3")
    p("s_add_u32 s4, s4, s3")
    p("s_and_b32 s5, s4, 31")
    p("s_lshr_b32 s6, s4, 5")
    p(f"s_mov_b32 s7, {C}")
    p("v_lshlrev_b32 v5, 4, v0")
    for k in range(20):
        if k < 1: so = "0"
        p(f"s_mov_b32 s{60+k}, {8192*k}")
    for k in range(20):
        p(f"buffer_load_dwordx4 v[{64+4*k}:{67+4*k}], v5, s[48:51], s{60+k} offen")
    p("s_lshl_b32 s8, s6, 5")
    p("v_add_u32 v6, s8, v3")
    p("s_movk_i32 s9, 1280")
    p("v_mul_lo_u32 v6, v6, s9")
    p("s_mul_i32 s10, s5, 40")
    p("v_add_u32 v6, s10, v6")
    p("v_lshl_add_u32 v7, v4, 4, v6")
    p("buffer_load_dwordx4 v[8:11], v7, s[44:47], 0 offen")
    p("v_mov_b32 v58, 0x7fffffff")
    p("v_cmp_eq_u32 vcc, 0, v4")
    p("s_nop 1")
    p("v_cndmask_b32 v7, v58, v6, vcc")
    p("buffer_load_dwordx2 v[12:13], v7, s[44:47], 0 offen offset:32")
    for k in range(20):
        p(f"s_waitcnt vmcnt({19-k+2})")
        p(f"ds_write_b128 v5, v[{64+4*k}:{67+4*k}] offset:{(8192*k) & 0xffff}" if k < 8 else
          f"ds_write_b128 v59, v[{64+4*k}:{67+4*k}] offset:{8192*(k-8)}" if k < 16 else
          f"ds_write_b128 v60, v[{64+4*k}:{67+4*k}] offset:{8192*(k-16)}")
        if k == 0:
            p("v_add_u32 v59, 65536, v5")
            p("v_add_u32 v60, 131072, v5")
    p("v_mov_b32 v14, 0"); p("v_mov_b32 v15, 0")
    for r in (26, 27, 30, 31): p(f"v_mov_b32 v{r}, 0")
    p("v_mov_b32 v58, 0x3f803f80")
    p("v_cmp_eq_u32 vcc, 20, v3")
    p("s_nop 1")
    for r in range(32, 48):
        p(f"v_cndmask_b32 v{r}, 0, v58, vcc")
    for r in range(96, 112): p(f"v_mov_b32 v{r}, 0")
    p("v_mov_b32 v56, 0xff800000")
    p("v_mov_b32 v57, 0")
    p("s_mov_b32 s12, 0x000fffff")
    p("s_mov_b32 s13, 0x000fffff")
    p("v_lshlrev_b32 v128, 5, v3")
    p("v_lshl_add_u32 v128, v4, 4, v128")
    p("v_lshlrev_b32 v129, 3, v3")
    p(f"v_add_u32 v129, {KV_KHI}, v129")
    p("v_and_b32 v61, 15, v3")
    for tt in range(4):
        for mf in range(2):
            r = 130 + 2 * tt + mf
            p(f"v_add_u32 v{r}, {4*tt+2*mf}, v4")
            p(f"v_xor_b32 v{r}, v{r}, v61")
            p(f"v_lshlrev_b32 v{r}, 4, v{r}")
            p(f"v_lshl_add_u32 v{r}, v3, 12, v{r}")
            p(f"v_add_u32 v{r}, {KV_VT}, v{r}")
    p("s_waitcnt vmcnt(0) lgkmcnt(0)")
    p("s_barrier")

    KL = [16, 20]; KH = [24, 28]; VA = [32, 40]; S = [64, 80]
    def readK(tt, buf):
        p(f"ds_read_b128 v[{KL[buf]}:{KL[buf]+3}], v128 offset:{1024*tt}")
        p(f"ds_read_b64 v[{KH[buf]}:{KH[buf]+1}], v129 offset:{256*tt}")
    def readV(tt, buf):
        p("s_mov_b64 exec, s[12:13]")
        for mf in range(2):
            r = 130 + 2 * (tt & 3) + mf
            p(f"ds_read_b128 v[{VA[buf]+4*mf}:{VA[buf]+4*mf+3}], v{r} offset:{256*(tt>>2)}")
        p("s_mov_b64 exec, -1")
    def mfmaS(buf):
        s = S[buf]
        p(f"v_mfma_f32_32x32x16_bf16 v[{s}:{s+15}], v[{KL[buf]}:{KL[buf]+3}], v[8:11], 0")
        p(f"v_mfma_f32_32x32x16_bf16 v[{s}:{s+15}], v[{KH[buf]}:{KH[buf]+3}], v[12:15], v[{s}:{s+15}]")
    def softmax(buf, tag):
        s = S[buf]
        R = lambda i: f"v{s+i}"
        p(f"v_max3_f32 v58, {R(0)}, {R(1)}, {R(2)}")
        p(f"v_max3_f32 v59, {R(3)}, {R(4)}, {R(5)}")
        p(f"v_max3_f32 v60, {R(6)}, {R(7)}, {R(8)}")
        p(f"v_max3_f32 v61, {R(9)}, {R(10)}, {R(11)}")
        p(f"v_max3_f32 v62, {R(12)}, {R(13)}, {R(14)}")
        p(f"v_max3_f32 v58, v58, v59, {R(15)}")
        p(f"v_max3_f32 v60, v60, v61, v62")
        p(f"v_max3_f32 v58, v58, v60, v56")
        p("v_mov_b32 v59, v58")
        p("s_nop 1")
        p("v_permlane32_swap_b32 v58, v59")
        p("v_max_f32 v58, v58, v59")
        p("v_cmp_gt_f32 vcc, v58, v56")
        p("s_nop 1")
        p(f"s_cbranch_vccz attn_skip_{tag}")
        p("v_sub_f32 v59, v56, v58")
        p("v_mul_f32 v59, s7, v59")
        p("v_exp_f32 v59, v59")
        p("v_mov_b32 v56, v58")
        p("v_mul_f32 v57, s7, v58")
        for r in range(96, 108):
            p(f"v_mul_f32 v{r}, v{r}, v59")
        p(f"attn_skip_{tag}:")
        for i in range(16):
            p(f"v_fma_f32 {R(i)}, {R(i)}, s7, -v57")
        for i in range(16):
            p(f"v_exp_f32 {R(i)}, {R(i)}")
        p("s_nop 0")
        for i in range(8):
            p(f"v_cvt_pk_bf16_f32 v{48+i}, {R(2*i)}, {R(2*i+1)}")
    def mfmaO(buf):
        p("s_nop 1")
        for mf in range(2):
            p(f"v_mfma_f32_32x32x16_bf16 v[96:111], v[{VA[buf]+4*mf}:{VA[buf]+4*mf+3}], v[{48+4*mf}:{51+4*mf}], v[96:111]")

    readK(0, 0); readK(1, 1); readV(0, 0)
    p("s_waitcnt lgkmcnt(4)")
    mfmaS(0)
    p("s_mov_b32 s11, 0")
    p("attn_loop:")
    for tt in range(4):
        b = tt & 1
        readK(tt + 2, b)
        readV(tt + 1, b ^ 1)
        p("s_waitcnt lgkmcnt(4)")
        mfmaS(b ^ 1)
        p("s_nop 7")
        softmax(b, tt)
        mfmaO(b)
    p("v_add_u32 v128, 4096, v128")
    p("v_add_u32 v129, 1024, v129")
    for r in range(130, 138): p(f"v_add_u32 v{r}, 256, v{r}")
    p("s_add_u32 s11, s11, 1")
    p("s_cmp_lt_u32 s11, 16")
    p("s_cbranch_scc1 attn_loop")
    p("s_nop 15")
    p("s_waitcnt lgkmcnt(0)")
    p("v_mov_b32 v58, v104")
    p("v_mov_b32 v59, v104")
    p("s_nop 1")
    p("v_permlane32_swap_b32 v58, v59")
    p("v_rcp_f32 v59, v59")
    p("s_nop 0")
    for r in range(96, 108):
        p(f"v_mul_f32 v{r}, v{r}, v59")
    for i in range(6):
        p(f"v_cvt_pk_bf16_f32 v{48+i}, v{96+2*i}, v{97+2*i}")
    p("v_lshl_add_u32 v7, v4, 3, v6")
    p("buffer_store_dwordx2 v[48:49], v7, s[52:55], 0 offen")
    p("buffer_store_dwordx2 v[50:51], v7, s[52:55], 0 offen offset:16")
    p("v_cmp_eq_u32 vcc, 0, v4")
    p("s_and_saveexec_b64 s[14:15], vcc")
    p("s_cbranch_execz attn_end")
    p("buffer_store_dwordx2 v[52:53], v7, s[52:55], 0 offen offset:32")
    p("attn_end:")
    p("s_endpgm")
    return name, 144, (NWG, 512, KV_SIZE)
```

```python
from common import *

def gen_conv(p):
    name = "conv_kernel"
    header(p, name)
    NWG = 160
    UREG = 7680; WREG = 11840; WBASE = 16384
    p(f"s_cmp_ge_u32 s2, {NWG}")
    p("s_cbranch_scc1 conv_end")
    load_ptrs(p)
    p("v_lshrrev_b32 v2, 6, v0")
    p("v_and_b32 v1, 63, v0")
    p("v_and_b32 v3, 31, v0")
    p("v_readfirstlane_b32 s3, v2")
    p("v_bfe_u32 v4, v0, 5, 1")
    p("s_waitcnt lgkmcnt(0)")
    srd(p, 44, 40, WS_XTA, XSZ)
    srd(p, 48, 40, WS_XTB, XSZ)
    srd(p, 52, 40, WS_KREV, 640 * KREV_STRIDE)
    srd(p, 56, 40, WS_STATS, 2048 * 32)
    p("s_lshl_b32 s4, s2, 2")
    p("s_add_u32 s4, s4, s3")
    p("s_lshl_b32 s5, s4, 1")
    p("s_and_b32 s5, s5, 0xfffffffc")
    p("s_load_dword s6, s[28:29], s5")
    p("v_lshlrev_b32 v5, 5, v0")
    for k in range(8):
        so = f"s{60+k}"
        p(f"s_mov_b32 {so}, {8192*k}")
    for k in range(8):
        p(f"buffer_load_dwordx4 v[{64+8*k}:{67+8*k}], v5, s[56:59], s{60+k} offen")
        p(f"buffer_load_dwordx4 v[{68+8*k}:{71+8*k}], v5, s[56:59], s{60+k} offen offset:16")
    p("s_lshl_b32 s7, s4, 12")
    p(f"s_mul_i32 s8, s4, {KREV_STRIDE}")
    p("v_lshlrev_b32 v6, 4, v1")
    for k in range(4):
        p(f"buffer_load_dwordx4 v[{128+4*k}:{131+4*k}], v6, s[44:47], s7 offen offset:{1024*k}")
    for k in range(4):
        p(f"buffer_load_dwordx4 v[{144+4*k}:{147+4*k}], v6, s[52:55], s8 offen offset:{1024*k}")
    p("s_add_u32 s12, s8, 4096")
    p(f"buffer_load_dwordx4 v[160:163], v6, s[52:55], s12 offen")
    p(f"s_mul_i32 s9, s3, {WREG}")
    p(f"s_add_u32 s9, s9, {WBASE}")
    p(f"s_add_u32 s10, s9, {UREG}")
    p("v_add_u32 v7, s9, v6")
    for i in range(4): p(f"v_mov_b32 v{8+i}, 0")
    for k in range(3):
        p(f"ds_write_b128 v7, v[8:11] offset:{1024*k}")
    p("v_lshlrev_b32 v12, 3, v0")
    for k in range(8):
        b = 64 + 8 * k
        p(f"s_waitcnt vmcnt({(7-k)*2+9})")
        p(f"v_add_f32 v{b}, v{b}, v{b+2}")
        p(f"v_add_f32 v{b+1}, v{b+1}, v{b+3}")
        p(f"v_add_f32 v{b+4}, v{b+4}, v{b+6}")
        p(f"v_add_f32 v{b+5}, v{b+5}, v{b+7}")
        p(f"v_add_f32 v{b}, v{b}, v{b+4}")
        p(f"v_add_f32 v{b+1}, v{b+1}, v{b+5}")
        ln_row_params(p, f"v{b}", f"v{b+1}", f"v{b+2}", f"v{b+3}", f"v{b+4}", f"v{b+5}")
        p(f"ds_write_b64 v12, v[{b+2}:{b+3}] offset:{2048*k}")
    p("v_add_u32 v13, s10, v6")
    p("s_waitcnt vmcnt(0)")
    for k in range(4):
        p(f"ds_write_b128 v13, v[{144+4*k}:{147+4*k}] offset:{1024*k}")
    p("v_cmp_gt_u32 vcc, 4, v1")
    p("s_and_saveexec_b64 s[14:15], vcc")
    p("ds_write_b128 v13, v[160:163] offset:4096")
    p("s_mov_b64 exec, s[14:15]")
    p("s_waitcnt lgkmcnt(0)")
    p("s_barrier")
    p("s_and_b32 s11, s4, 1")
    p("s_lshl_b32 s11, s11, 4")
    p("s_lshr_b32 s6, s6, s11")
    p("s_lshl_b32 s6, s6, 16")
    p("v_lshlrev_b32 v14, 6, v1")
    p("v_lshrrev_b32 v15, 2, v1")
    p("v_mul_u32_u24 v15, 80, v15")
    p("v_and_b32 v16, 3, v1")
    p("v_lshl_add_u32 v15, v16, 4, v15")
    p("v_add_u32 v15, s9, v15")
    for k in range(4):
        for i in range(4):
            p(f"ds_read_b128 v[{64+16*k+4*i}:{67+16*k+4*i}], v14 offset:{4096*k+16*i}")
    p("s_waitcnt lgkmcnt(0)")
    for k in range(4):
        for i in range(4):
            x = f"v{128+4*k+i}"; sb = 64 + 16 * k + 4 * i
            p(f"v_lshlrev_b32 v20, 16, {x}")
            p(f"v_and_b32 v21, 0xffff0000, {x}")
            p(f"v_sub_f32 v20, v20, v{sb}")
            p(f"v_sub_f32 v21, v21, v{sb+2}")
            p(f"v_cvt_pk_bf16_f32 v22, v20, v21")
            p(f"v_lshlrev_b32 v20, 16, v22")
            p(f"v_and_b32 v21, 0xffff0000, v22")
            p(f"v_mul_f32 v20, v20, v{sb+1}")
            p(f"v_mul_f32 v21, v21, v{sb+3}")
            p(f"v_cvt_pk_bf16_f32 v{24+i}, v20, v21")
        p(f"ds_write_b128 v15, v[24:27] offset:{2480+1280*k}")
    p("v_mul_u32_u24 v60, 80, v3")
    p("v_lshl_add_u32 v60, v4, 4, v60")
    p("v_add_u32 v60, s9, v60")
    p("v_lshlrev_b32 v61, 1, v3")
    p("v_sub_u32 v61, 62, v61")
    p("v_lshl_add_u32 v61, v4, 4, v61")
    p("v_add_u32 v61, s10, v61")
    for i in range(32): p(f"v_mov_b32 v{128+i}, 0")
    p("s_waitcnt lgkmcnt(0)")
    def reads(s):
        base = 64 + 24 * (s & 1)
        n = 0
        for hf in range(2):
            p(f"ds_read_b128 v[{base+4*hf}:{base+4*hf+3}], v60 offset:{80*s+32*hf}"); n += 1
            p(f"ds_read_b128 v[{base+8+4*hf}:{base+8+4*hf+3}], v61 offset:{64*s+32*hf}"); n += 1
            if s < 32:
                p(f"ds_read_b128 v[{base+16+4*hf}:{base+16+4*hf+3}], v61 offset:{64*s+32*hf+2048}"); n += 1
        return n
    reads(0)
    for s in range(64):
        n = reads(s + 1) if s < 63 else 0
        p(f"s_waitcnt lgkmcnt({n})")
        base = 64 + 24 * (s & 1)
        for hf in range(2):
            B = f"v[{base+4*hf}:{base+4*hf+3}]"
            p(f"v_mfma_f32_32x32x16_bf16 v[144:159], v[{base+8+4*hf}:{base+8+4*hf+3}], {B}, v[144:159]")
            if s < 32:
                p(f"v_mfma_f32_32x32x16_bf16 v[128:143], v[{base+16+4*hf}:{base+16+4*hf+3}], {B}, v[128:143]")
    p("v_lshlrev_b32 v5, 6, v3")
    p("v_lshl_add_u32 v5, v4, 3, v5")
    for a in range(2):
        for q4 in range(4):
            r = 64 + 2 * (4 * a + q4)
            p(f"buffer_load_dwordx2 v[{r}:{r+1}], v5, s[44:47], s7 offen offset:{2048*a+16*q4}")
    p("v_mul_u32_u24 v6, 80, v3")
    p("v_lshl_add_u32 v6, v4, 3, v6")
    p("v_add_u32 v6, s9, v6")
    for a in range(2):
        for q4 in range(4):
            r = 80 + 2 * (4 * a + q4)
            p(f"ds_read_b64 v[{r}:{r+1}], v6 offset:{2480+2560*a+16*q4}")
    p("s_nop 7")
    p("s_waitcnt vmcnt(0) lgkmcnt(0)")
    for a in range(2):
        for q4 in range(4):
            xr = 64 + 2 * (4 * a + q4); hr = 80 + 2 * (4 * a + q4)
            for j in range(4):
                y = f"v{128+16*a+4*q4+j}"
                hsrc = f"v{hr+j//2}"; xsrc = f"v{xr+j//2}"
                if j % 2 == 0:
                    p(f"v_lshlrev_b32 v20, 16, {hsrc}")
                    p(f"v_lshlrev_b32 v21, 16, {xsrc}")
                else:
                    p(f"v_and_b32 v20, 0xffff0000, {hsrc}")
                    p(f"v_and_b32 v21, 0xffff0000, {xsrc}")
                p(f"v_mul_f32 v20, s6, v20")
                bf16r(p, "v20", "v20")
                bf16r(p, y, y)
                p(f"v_add_f32 v20, v20, {y}")
                bf16r(p, "v20", "v20")
                p(f"v_add_f32 v{24+j}, v20, v21")
            p(f"v_cvt_pk_bf16_f32 v28, v24, v25")
            p(f"v_cvt_pk_bf16_f32 v29, v26, v27")
            p(f"buffer_store_dwordx2 v[28:29], v5, s[48:51], s7 offen offset:{2048*a+16*q4}")
    p("conv_end:")
    p("s_endpgm")
    return name, 164, (NWG, 256, WBASE + 4 * WREG)
```

```python
from common import *
from k_prep import VM

def gen_oproj(p, final):
    name = "oprojf_kernel" if final else "oprojt_kernel"
    pre = "opf" if final else "opt"
    header(p, name)
    NWG = 256
    p(f"s_cmp_ge_u32 s2, {NWG}")
    p(f"s_cbranch_scc1 {pre}_end")
    load_ptrs(p)
    p("v_lshrrev_b32 v2, 6, v0")
    p("v_and_b32 v1, 63, v0")
    p("v_and_b32 v5, 15, v0")
    p("v_readfirstlane_b32 s3, v2")
    p("v_bfe_u32 v6, v0, 4, 2")
    p("s_waitcnt lgkmcnt(0)")
    srd(p, 44, 40, WS_O, XSZ)
    srd(p, 48, 40, WS_WOT, 640 * 1280)
    if final:
        srd(p, 52, 40, WS_XR, XSZ)
        srd(p, 56, 42, 0, XSZ)
    else:
        srd(p, 52, 40, WS_XTB, XSZ)
        srd(p, 56, 40, WS_XTA, XSZ)
    srd(p, 60, 40, WS_STATS, 2048 * 32)
    p("s_lshr_b32 s4, s2, 2")
    p("s_and_b32 s5, s2, 3")
    p("s_lshl_b32 s4, s4, 5")
    p("s_and_b32 s6, s3, 1")
    p("s_lshl_b32 s6, s6, 4")
    p("s_add_u32 s4, s4, s6")
    p("s_lshr_b32 s7, s3, 1")
    p("s_mul_i32 s8, s5, 10")
    p("s_mul_i32 s9, s7, 5")
    p("s_add_u32 s8, s8, s9")
    p("s_movk_i32 s9, 1280")
    p("v_add_u32 v8, s4, v5")
    p("v_mul_lo_u32 v8, v8, s9")
    p("v_lshl_add_u32 v10, v6, 4, v8")
    vm = VM(p)
    Hb = 64
    for s in range(20):
        p(f"buffer_load_dwordx4 v[{Hb+4*s}:{Hb+4*s+3}], v10, s[44:47], 0 offen offset:{64*s}")
        vm.issue("a")
    p("v_mul_lo_u32 v11, v5, s9")
    p("v_lshl_add_u32 v11, v6, 4, v11")
    for i in range(5):
        p(f"s_add_u32 s{64+i}, s8, {i}")
        p(f"s_mul_i32 s{64+i}, s{64+i}, 20480")
    if final:
        p("v_lshl_add_u32 v12, v6, 3, v8")
        p("s_lshl_b32 s10, s8, 5")
    else:
        p("v_lshlrev_b32 v12, 12, v5")
        p("v_lshl_add_u32 v12, v6, 3, v12")
        p("s_lshl_b32 s11, s4, 1")
        p("v_add_u32 v12, s11, v12")
        for i in range(5):
            p(f"s_add_u32 s{70+i}, s8, {i}")
            p(f"s_lshl_b32 s{70+i}, s{70+i}, 16")
        for i in range(8): p(f"v_mov_b32 v{16+i}, 0")
    BUF = [144, 184]; ACC = 224
    def issue_half(hidx):
        b = BUF[hidx & 1]
        for s in range(10):
            ks = 10 * (hidx & 1) + s
            p(f"buffer_load_dwordx4 v[{b+4*s}:{b+4*s+3}], v11, s[48:51], s{64+hidx//2} offen offset:{64*ks}")
            vm.issue(("w", hidx))
    def mfma_half(hidx, first):
        b = BUF[hidx & 1]
        for s in range(10):
            ks = 10 * (hidx & 1) + s
            W = f"v[{b+4*s}:{b+4*s+3}]"; Hh = f"v[{Hb+4*ks}:{Hb+4*ks+3}]"
            A, B = (W, Hh) if final else (Hh, W)
            Cc = "0" if (first and s == 0) else f"v[{ACC}:{ACC+3}]"
            p(f"v_mfma_f32_16x16x32_bf16 v[{ACC}:{ACC+3}], {A}, {B}, {Cc}")
    for i in range(5):
        if final:
            p(f"buffer_load_dwordx2 v[{32+2*i}:{33+2*i}], v12, s[52:55], s10 offen offset:{32*i}")
        else:
            p(f"buffer_load_dwordx2 v[{32+2*i}:{33+2*i}], v12, s[52:55], s{70+i} offen")
        vm.issue("x")
    issue_half(0); issue_half(1)
    for i in range(5):
        for hf in range(2):
            hidx = 2 * i + hf
            vm.wait(("w", hidx))
            mfma_half(hidx, hf == 0)
            if hidx + 2 < 10: issue_half(hidx + 2)
        p("s_nop 7")
        for j in range(4):
            a = f"v{ACC+j}"
            bf16r(p, a, a)
            src = f"v{32+2*i+j//2}"
            if j % 2 == 0: p(f"v_lshlrev_b32 v24, 16, {src}")
            else: p(f"v_and_b32 v24, 0xffff0000, {src}")
            p(f"v_add_f32 v{26+j}, v24, {a}")
        p("v_cvt_pk_bf16_f32 v30, v26, v27")
        p("v_cvt_pk_bf16_f32 v31, v28, v29")
        if final:
            p(f"buffer_store_dwordx2 v[30:31], v12, s[56:59], s10 offen offset:{32*i}")
        else:
            p(f"buffer_store_dwordx2 v[30:31], v12, s[56:59], s{70+i} offen")
            for j in range(4):
                src = f"v{30+j//2}"
                if j % 2 == 0: p(f"v_lshlrev_b32 v24, 16, {src}")
                else: p(f"v_and_b32 v24, 0xffff0000, {src}")
                p(f"v_add_f32 v{16+j}, v{16+j}, v24")
                p(f"v_fma_f32 v{20+j}, v24, v24, v{20+j}")
        vm.issue("st")
    if not final:
        row16_sum(p, [f"v{16+i}" for i in range(8)])
        p("s_and_b32 s12, s3, 1")
        p("s_lshl_b32 s12, s12, 7")
        p("v_lshlrev_b32 v13, 5, v6")
        p("v_add_u32 v13, s12, v13")
        p("s_cmp_eq_u32 s7, 0")
        p(f"s_cbranch_scc1 {pre}_w0")
        for j in range(4):
            p(f"ds_write_b32 v13, v{16+j} offset:{8*j}")
            p(f"ds_write_b32 v13, v{20+j} offset:{8*j+4}")
        p("s_waitcnt lgkmcnt(0)")
        p("s_barrier")
        p("s_endpgm")
        p(f"{pre}_w0:")
        p("s_barrier")
        p("ds_read_b128 v[32:35], v13")
        p("ds_read_b128 v[36:39], v13 offset:16")
        p("v_lshlrev_b32 v14, 2, v6")
        p("v_add_u32 v14, s4, v14")
        p("v_lshlrev_b32 v14, 5, v14")
        p("s_lshl_b32 s12, s5, 3")
        p("v_add_u32 v14, s12, v14")
        p("s_waitcnt lgkmcnt(0)")
        for j in range(4):
            p(f"v_add_f32 v{32+2*j}, v{32+2*j}, v{16+j}")
            p(f"v_add_f32 v{33+2*j}, v{33+2*j}, v{20+j}")
        p("v_cmp_eq_u32 vcc, 0, v5")
        p("s_and_saveexec_b64 s[14:15], vcc")
        p(f"s_cbranch_execz {pre}_end")
        for j in range(4):
            p(f"buffer_store_dwordx2 v[{32+2*j}:{33+2*j}], v14, s[60:63], 0 offen offset:{32*j}")
    p(f"{pre}_end:")
    p("s_endpgm")
    return name, 228, (NWG, 256, 0 if final else 1024)
```

```python
from common import *

class VM:
    def __init__(self, p): self.p = p; self.q = []
    def issue(self, tag): self.q.append(tag)
    def wait(self, tag):
        idx = max(i for i, t in enumerate(self.q) if t == tag)
        n = len(self.q) - 1 - idx
        assert n <= 63
        self.p(f"s_waitcnt vmcnt({n})")
        self.q = self.q[idx + 1:]
    def wait_all(self):
        self.p("s_waitcnt vmcnt(0)"); self.q = []

def split_hilo(p, X, hi, lo, tmp):
    for i in range(4):
        p(f"v_cvt_pk_bf16_f32 {hi[i]}, {X[2*i]}, {X[2*i+1]}")
    for i in range(4):
        p(f"v_lshlrev_b32 {tmp[0]}, 16, {hi[i]}")
        p(f"v_and_b32 {tmp[1]}, 0xffff0000, {hi[i]}")
        p(f"v_sub_f32 {X[2*i]}, {X[2*i]}, {tmp[0]}")
        p(f"v_sub_f32 {X[2*i+1]}, {X[2*i+1]}, {tmp[1]}")
        p(f"v_cvt_pk_bf16_f32 {lo[i]}, {X[2*i]}, {X[2*i+1]}")

def transposed_store_stats_tile(p, acc, vaddr, soff, srd_out, tmp, ssum, ssq):
    pass

def gen_prep(p):
    name = "prep_kernel"
    header(p, name)
    NK = 640; NLN = 32; NW = 105
    p(f"s_cmp_ge_u32 s2, {NK+NLN+NW}")
    p("s_cbranch_scc1 prep_end")
    load_ptrs(p)
    p("v_lshrrev_b32 v2, 6, v0")
    p("v_and_b32 v1, 63, v0")
    p("v_and_b32 v3, 31, v0")
    p("v_readfirstlane_b32 s3, v2")
    p("v_bfe_u32 v4, v0, 5, 1")
    p("v_and_b32 v5, 15, v0")
    p("v_bfe_u32 v6, v0, 4, 2")
    p("s_waitcnt lgkmcnt(0)")
    PSZ = 640 * 128 * 2
    srd(p, 44, 18, 0, PSZ); srd(p, 48, 20, 0, PSZ); srd(p, 52, 22, 0, PSZ); srd(p, 56, 24, 0, PSZ)
    srd(p, 60, 40, WS_KREV, 640 * KREV_STRIDE)
    srd(p, 64, 16, 0, XSZ)
    srd(p, 68, 40, WS_XTA, XSZ)
    srd(p, 72, 40, WS_STATS, 2048 * 32)
    srd(p, 76, 32, 0, 640 * 640 * 2)
    srd(p, 80, 34, 0, 640 * 20 * 2)
    srd(p, 84, 36, 0, 640 * 20 * 2)
    srd(p, 88, 38, 0, 640 * 640 * 2)
    srd(p, 92, 40, WS_WT, 704 * 1280)
    srd(p, 96, 40, WS_WOT, 640 * 1280)
    p("s_cmp_ge_u32 s2, 672")
    p("s_cbranch_scc1 prep_w")
    p("s_cmp_ge_u32 s2, 640")
    p("s_cbranch_scc1 prep_ln")

    PART = 2048
    PSTR = 2052 * 4
    p("s_lshl_b32 s4, s2, 1")
    p("s_and_b32 s4, s4, 0xfffffffc")
    p("s_load_dword s5, s[26:27], s4")
    p("v_and_b32 v7, 127, v0")
    p("s_lshl_b32 s6, s2, 8")
    p("v_lshlrev_b32 v8, 1, v7")
    p("buffer_load_ushort v10, v8, s[44:47], s6 offen")
    p("buffer_load_ushort v11, v8, s[48:51], s6 offen")
    p("buffer_load_ushort v12, v8, s[52:55], s6 offen")
    p("buffer_load_ushort v13, v8, s[56:59], s6 offen")
    p("s_and_b32 s7, s2, 1")
    p("s_lshl_b32 s7, s7, 4")
    p("s_waitcnt lgkmcnt(0)")
    p("s_lshr_b32 s5, s5, s7")
    p("s_lshl_b32 s5, s5, 16")
    p(f"v_mov_b32 v14, s5")
    p(f"v_mul_f32 v14, {LOG2E}, v14")
    p("v_exp_f32 v14, v14")
    p("s_waitcnt vmcnt(0)")
    bf16r(p, "v14", "v14")
    p("v_lshlrev_b32 v10, 16, v10")
    p("v_lshlrev_b32 v11, 16, v11")
    p("v_lshlrev_b32 v12, 16, v12")
    p("v_lshlrev_b32 v13, 16, v13")
    p(f"v_mul_f32 v10, {LOG2E}, v10")
    p("v_exp_f32 v10, v10")
    p("v_mul_f32 v17, v11, v14")
    bf16r(p, "v10", "v10")
    p("v_mul_f32 v16, v10, v14")
    p(f"v_mul_f32 v16, 0xbfb8aa3b, v16")
    p(f"v_mul_f32 v17, {INV2PI}, v17")
    p("v_mul_f32 v18, v12, v14")
    p("v_mul_f32 v19, v13, v14")
    p("v_add_f32 v18, v18, v18")
    p("v_add_f32 v19, v19, v19")
    p("v_lshlrev_b32 v9, 4, v7")
    p("ds_write_b128 v9, v[16:19]")
    p("s_waitcnt lgkmcnt(0)")
    p("s_barrier")
    p("s_lshl_b32 s8, s3, 9")
    p("v_lshlrev_b32 v9, 4, v3")
    p("v_add_u32 v9, s8, v9")
    p("ds_read_b128 v[16:19], v9")
    p("v_cvt_f32_u32 v21, v3")
    p("v_mul_f32 v20, 0x42800000, v21")
    p("v_add_f32 v22, 0x42000000, v21")
    p("s_waitcnt lgkmcnt(0)")
    p("v_mul_f32 v24, 0x45000000, v16")
    p("v_mul_f32 v25, 0x45000000, v17")
    p("v_exp_f32 v24, v24")
    p("v_fract_f32 v25, v25")
    p("v_cos_f32 v26, v25")
    p("v_sin_f32 v27, v25")
    p("v_mul_f32 v26, v18, v26")
    p("v_fma_f32 v26, -v19, v27, v26")
    p("v_mul_f32 v26, v26, v24")
    p("v_cmp_gt_u32 vcc, 32, v1")
    p("s_nop 1")
    p("v_cndmask_b32 v26, 0, v26, vcc")
    p("s_nop 1")
    row16_sum(p, ["v26"])
    p("s_nop 0")
    p("v_readlane_b32 s9, v26, 0")
    p("v_readlane_b32 s10, v26, 16")
    p("s_mul_i32 s11, s3, " + str(PSTR))
    p(f"s_add_u32 s11, s11, {PART}")
    p("v_mov_b32 v26, s9")
    p("v_add_f32 v26, s10, v26")
    p(f"v_mov_b32 v27, s11")
    p("ds_write_b32 v27, v26 offset:8192")
    for i in range(32):
        p(f"v_mov_b32 v{96+i}, 0")
    p("v_lshlrev_b32 v9, 6, v4")
    p("v_add_u32 v9, s8, v9")
    XA = [f"v{32+i}" for i in range(8)]
    XB0 = [f"v{40+i}" for i in range(8)]
    XB1 = [f"v{48+i}" for i in range(8)]
    for ks in range(4):
        for j in range(4):
            p(f"ds_read_b128 v[{136+4*j}:{139+4*j}], v9 offset:{ks*128+j*16}")
        p("s_waitcnt lgkmcnt(0)")
        for (X, pv, isA) in ((XA, "v20", True), (XB0, "v21", False), (XB1, "v22", False)):
            for j in range(4):
                P = 136 + 4 * j; T = 152 + 4 * j
                p(f"v_mul_f32 v{T}, v{P}, {pv}")
                p(f"v_mul_f32 v{T+1}, v{P+1}, {pv}")
            for j in range(4):
                T = 152 + 4 * j
                p(f"v_exp_f32 v{T}, v{T}")
                p(f"v_fract_f32 v{T+1}, v{T+1}")
            for j in range(4):
                T = 152 + 4 * j
                p(f"v_cos_f32 v{T+2}, v{T+1}")
                p(f"v_sin_f32 v{T+3}, v{T+1}")
            p("s_nop 0")
            for j in range(4):
                P = 136 + 4 * j; T = 152 + 4 * j
                if isA:
                    p(f"v_mul_f32 {X[2*j]}, v{P+2}, v{T+2}")
                    p(f"v_mul_f32 {X[2*j+1]}, v{P+2}, v{T+3}")
                    p(f"v_fma_f32 {X[2*j]}, -v{P+3}, v{T+3}, {X[2*j]}")
                    p(f"v_fma_f32 {X[2*j+1]}, v{P+3}, v{T+2}, {X[2*j+1]}")
                    p(f"v_mul_f32 {X[2*j]}, {X[2*j]}, v{T}")
                    p(f"v_mul_f32 {X[2*j+1]}, {X[2*j+1]}, v{T}")
                else:
                    p(f"v_mul_f32 {X[2*j]}, v{T}, v{T+2}")
                    p(f"v_mul_f32 {X[2*j+1]}, -v{T}, v{T+3}")
        split_hilo(p, XA, [f"v{56+i}" for i in range(4)], [f"v{60+i}" for i in range(4)], ["v168", "v169"])
        split_hilo(p, XB0, [f"v{64+i}" for i in range(4)], [f"v{68+i}" for i in range(4)], ["v168", "v169"])
        split_hilo(p, XB1, [f"v{72+i}" for i in range(4)], [f"v{76+i}" for i in range(4)], ["v168", "v169"])
        p("s_nop 1")
        p("v_mfma_f32_32x32x16_bf16 v[96:111], v[56:59], v[64:67], v[96:111]")
        p("v_mfma_f32_32x32x16_bf16 v[112:127], v[56:59], v[72:75], v[112:127]")
        p("v_mfma_f32_32x32x16_bf16 v[96:111], v[56:59], v[68:71], v[96:111]")
        p("v_mfma_f32_32x32x16_bf16 v[112:127], v[56:59], v[76:79], v[112:127]")
        p("v_mfma_f32_32x32x16_bf16 v[96:111], v[60:63], v[64:67], v[96:111]")
        p("v_mfma_f32_32x32x16_bf16 v[112:127], v[60:63], v[72:75], v[112:127]")
    p("v_lshlrev_b32 v9, 10, v4")
    p("v_lshl_add_u32 v9, v3, 2, v9")
    p("v_add_u32 v9, s11, v9")
    p("s_nop 15")
    for tb in range(2):
        for q in range(16):
            a = 8 * (q >> 2) + (q & 3)
            p(f"ds_write_b32 v9, v{96+16*tb+q} offset:{(64*a+32*tb)*4}")
    p("s_waitcnt lgkmcnt(0)")
    p("s_barrier")
    p("v_lshlrev_b32 v10, 3, v0")
    p("v_sub_u32 v10, 2047, v10")
    for j in range(8):
        p(f"v_subrev_u32 v{16+j}, {j}, v10")
        p(f"v_cvt_f32_u32 v{16+j}, v{16+j}")
    for j in range(8):
        bf16r(p, f"v{16+j}", f"v{16+j}")
    for j in range(8):
        p(f"v_cvt_u32_f32 v{16+j}, v{16+j}")
        p(f"v_lshlrev_b32 v{16+j}, 2, v{16+j}")
    for j in range(8):
        for w in range(4):
            p(f"ds_read_b32 v{32+4*j+w}, v{16+j} offset:{PART+w*PSTR}")
    p("s_waitcnt lgkmcnt(0)")
    for j in range(8):
        b = 32 + 4 * j
        p(f"v_add_f32 v{b}, v{b}, v{b+1}")
        p(f"v_add_f32 v{b+2}, v{b+2}, v{b+3}")
        p(f"v_add_f32 v{b}, v{b}, v{b+2}")
    for i in range(4):
        p(f"v_cvt_pk_bf16_f32 v{64+i}, v{32+8*i}, v{36+8*i}")
    p(f"s_mul_i32 s12, s2, {KREV_STRIDE}")
    p("v_lshlrev_b32 v11, 4, v0")
    p("buffer_store_dwordx4 v[64:67], v11, s[60:63], s12 offen")
    p("v_mov_b32 v68, 0"); p("v_mov_b32 v69, 0"); p("v_mov_b32 v70, 0"); p("v_mov_b32 v71, 0")
    p("v_add_u32 v11, 4096, v11")
    p("v_cmp_gt_u32 vcc, 4, v0")
    p("s_and_saveexec_b64 s[14:15], vcc")
    p("s_cbranch_execz prep_kg_done")
    p("buffer_store_dwordx4 v[68:71], v11, s[60:63], s12 offen")
    p("prep_kg_done:")
    p("s_endpgm")

    p("prep_ln:")
    p("s_sub_u32 s4, s2, 640")
    p("s_lshl_b32 s4, s4, 6")
    p("s_lshl_b32 s5, s3, 4")
    p("s_add_u32 s4, s4, s5")
    p("v_add_u32 v8, s4, v5")
    p("s_movk_i32 s6, 1280")
    p("v_mul_lo_u32 v8, v8, s6")
    p("v_lshl_add_u32 v8, v6, 4, v8")
    for s in range(20):
        p(f"buffer_load_dwordx4 v[{64+4*s}:{67+4*s}], v8, s[64:67], 0 offen offset:{64*s}")
    p("v_lshlrev_b32 v9, 3, v6")
    p("v_sub_u32 v9, v5, v9")
    p("v_mov_b32 v12, 0x3f80"); p("v_mov_b32 v13, 0x3f800000")
    for u in range(2):
        for i in range(4):
            p(f"v_cmp_eq_u32 vcc, {2*i-16*u}, v9")
            p(f"v_cmp_eq_u32 s[14:15], {2*i+1-16*u}, v9")
            p("s_nop 1")
            p(f"v_cndmask_b32 v{16+4*u+i}, 0, v12, vcc")
            p(f"v_cndmask_b32 v{16+4*u+i}, v{16+4*u+i}, v13, s[14:15]")
    for i in range(8):
        p(f"v_mov_b32 v{24+i}, 0")
    p("v_lshlrev_b32 v10, 12, v5")
    p("v_lshl_add_u32 v10, v6, 3, v10")
    p("s_lshl_b32 s7, s4, 1")
    p("v_add_u32 v10, s7, v10")
    p("s_mov_b32 s8, 0")
    for s in range(20):
        p(f"s_waitcnt vmcnt({min(63, (19-s) + 2*s)})")
        for u in range(2):
            c = 32 + 4 * u
            p(f"v_mfma_f32_16x16x32_bf16 v[{c}:{c+3}], v[{64+4*s}:{67+4*s}], v[{16+4*u}:{19+4*u}], 0")
        p("s_nop 7")
        for u in range(2):
            c = 32 + 4 * u
            for j in range(4):
                p(f"v_add_f32 v{24+j}, v{24+j}, v{c+j}")
                p(f"v_fma_f32 v{28+j}, v{c+j}, v{c+j}, v{28+j}")
            p(f"v_cvt_pk_bf16_f32 v{40+2*u}, v{c}, v{c+1}")
            p(f"v_cvt_pk_bf16_f32 v{41+2*u}, v{c+2}, v{c+3}")
            p(f"buffer_store_dwordx2 v[{40+2*u}:{41+2*u}], v10, s[68:71], s8 offen")
            p("s_add_u32 s8, s8, 65536")
    row16_sum(p, [f"v{24+i}" for i in range(8)])
    p("v_lshlrev_b32 v11, 2, v6")
    p("v_add_u32 v11, s4, v11")
    p("v_lshlrev_b32 v11, 5, v11")
    p("v_mov_b32 v46, 0"); p("v_mov_b32 v47, 0")
    for i in range(4): p(f"v_mov_b32 v{48+i}, 0")
    p("v_cmp_eq_u32 vcc, 0, v5")
    p("s_and_saveexec_b64 s[14:15], vcc")
    p("s_cbranch_execz prep_ln_done")
    for j in range(4):
        p(f"v_mov_b32 v44, v{24+j}")
        p(f"v_mov_b32 v45, v{28+j}")
        p(f"buffer_store_dwordx4 v[44:47], v11, s[72:75], 0 offen offset:{32*j}")
        p(f"buffer_store_dwordx4 v[48:51], v11, s[72:75], 0 offen offset:{32*j+16}")
        p("s_nop 1")
    p("prep_ln_done:")
    p("s_endpgm")

    p("prep_w:")
    OFF = ["s13", "s14", "s15", "s100"]
    p("s_sub_u32 s4, s2, 672")
    p("s_lshl_b32 s4, s4, 2")
    p("s_add_u32 s4, s4, s3")
    p("s_lshl_b32 s4, s4, 2")
    p("s_movk_i32 s6, 1280")
    p("v_mul_lo_u32 v9, v1, s6")
    p("v_lshlrev_b32 v8, 1, v1")
    p("s_cmp_ge_u32 s4, 880")
    p("s_cbranch_scc1 prep_w_o")
    p("s_cmp_ge_u32 s4, 800")
    p("s_cbranch_scc1 prep_w_kv")
    def div10(tau, chunk, nblk):
        p(f"s_mul_hi_u32 {chunk}, {tau}, 0xcccccccd")
        p(f"s_lshr_b32 {chunk}, {chunk}, 3")
        p(f"s_mul_i32 {nblk}, {chunk}, 10")
        p(f"s_sub_u32 {nblk}, {tau}, {nblk}")
    for i in range(4):
        p(f"s_add_u32 s5, s4, {i}")
        div10("s5", "s7", "s8")
        p("s_lshr_b32 s9, s7, 2"); p("s_lshl_b32 s9, s9, 5")
        p("s_and_b32 s10, s7, 3"); p("s_lshl_b32 s10, s10, 2")
        p("s_add_u32 s9, s9, s10")
        p("s_mul_i32 s9, s9, 1280")
        p("s_lshl_b32 s10, s8, 7")
        p("s_add_u32 s9, s9, s10")
        p("s_add_u32 s10, s9, 20480")
        for j in range(8):
            so = "s9" if j < 4 else "s10"
            p(f"buffer_load_ushort v{(16 if j%2==0 else 48)+4*i+j//2}, v8, s[76:79], {so} offen offset:{(j%4)*1280}")
        p("s_mul_i32 s11, s8, 81920")
        p("s_lshl_b32 s12, s7, 4")
        p(f"s_add_u32 {OFF[i]}, s11, s12")
    p("s_waitcnt vmcnt(0)")
    for i in range(16):
        p(f"v_lshl_or_b32 v{16+i}, v{48+i}, 16, v{16+i}")
    for i in range(4):
        p(f"buffer_store_dwordx4 v[{16+4*i}:{19+4*i}], v9, s[92:95], {OFF[i]} offen")
    p("s_endpgm")
    p("prep_w_kv:")
    p("v_mov_b32 v12, 0x7fffffff")
    p("v_cmp_gt_u32 vcc, 20, v1")
    p("v_subrev_u32 v13, 32, v1")
    p("s_nop 0")
    p("v_cndmask_b32 v10, v12, v8, vcc")
    p("v_cmp_gt_u32 vcc, 20, v13")
    p("v_lshlrev_b32 v13, 1, v13")
    p("s_nop 1")
    p("v_cndmask_b32 v11, v12, v13, vcc")
    for i in range(4):
        p(f"s_add_u32 s7, s4, {i-800}")
        p("s_lshr_b32 s9, s7, 2"); p("s_lshl_b32 s9, s9, 5")
        p("s_and_b32 s10, s7, 3"); p("s_lshl_b32 s10, s10, 2")
        p("s_add_u32 s9, s9, s10")
        p("s_mul_i32 s9, s9, 40")
        for j in range(8):
            off = (j % 4) * 40 + (640 if j >= 4 else 0)
            p(f"buffer_load_ushort v{(16 if j%2==0 else 48)+4*i+j//2}, v10, s[80:83], s9 offen offset:{off}")
            p(f"buffer_load_ushort v{(32 if j%2==0 else 64)+4*i+j//2}, v11, s[84:87], s9 offen offset:{off}")
        p("s_lshl_b32 s12, s7, 4")
        p(f"s_add_u32 {OFF[i]}, s12, {640*1280}")
    p("s_waitcnt vmcnt(0)")
    for i in range(16):
        p(f"v_or_b32 v{16+i}, v{16+i}, v{32+i}")
        p(f"v_or_b32 v{48+i}, v{48+i}, v{64+i}")
        p(f"v_lshl_or_b32 v{16+i}, v{48+i}, 16, v{16+i}")
    for i in range(4):
        p(f"buffer_store_dwordx4 v[{16+4*i}:{19+4*i}], v9, s[92:95], {OFF[i]} offen")
    p("s_endpgm")
    p("prep_w_o:")
    for i in range(4):
        p(f"s_add_u32 s5, s4, {i-880}")
        div10("s5", "s7", "s8")
        p("s_mul_i32 s9, s7, 10240")
        p("s_lshl_b32 s10, s8, 7")
        p("s_add_u32 s9, s9, s10")
        p("s_add_u32 s10, s9, 5120")
        for j in range(8):
            so = "s9" if j < 4 else "s10"
            p(f"buffer_load_ushort v{(16 if j%2==0 else 48)+4*i+j//2}, v8, s[88:91], {so} offen offset:{(j%4)*1280}")
        p("s_mul_i32 s11, s8, 81920")
        p("s_lshl_b32 s12, s7, 4")
        p(f"s_add_u32 {OFF[i]}, s11, s12")
    p("s_waitcnt vmcnt(0)")
    for i in range(16):
        p(f"v_lshl_or_b32 v{16+i}, v{48+i}, 16, v{16+i}")
    for i in range(4):
        p(f"buffer_store_dwordx4 v[{16+4*i}:{19+4*i}], v9, s[96:99], {OFF[i]} offen")
    p("prep_end:")
    p("s_endpgm")
    return name, 176, (NK + NLN + NW, 256, 2048 + 4 * 2052 * 4)
```

```python
from common import *
from k_prep import VM

def gen_qkv(p):
    name = "qkv_kernel"
    header(p, name)
    NWG = 256
    p(f"s_cmp_ge_u32 s2, {NWG}")
    p("s_cbranch_scc1 qkv_end")
    load_ptrs(p)
    p("v_lshrrev_b32 v2, 6, v0")
    p("v_and_b32 v1, 63, v0")
    p("v_and_b32 v5, 15, v0")
    p("v_readfirstlane_b32 s3, v2")
    p("v_bfe_u32 v6, v0, 4, 2")
    p("s_waitcnt lgkmcnt(0)")
    srd(p, 44, 40, WS_XTB, XSZ)
    srd(p, 48, 40, WS_WT, 704 * 1280)
    srd(p, 52, 40, WS_Q, XSZ)
    srd(p, 56, 40, WS_KV, KV_SIZE)
    srd(p, 60, 40, WS_XR, XSZ)
    p("s_lshr_b32 s4, s2, 3")
    p("s_and_b32 s5, s2, 7")
    p("s_lshl_b32 s4, s4, 6")
    p("s_lshl_b32 s6, s3, 4")
    p("s_add_u32 s4, s4, s6")
    p("v_lshlrev_b32 v8, 12, v5")
    p("v_lshl_add_u32 v8, v6, 3, v8")
    p("s_lshl_b32 s7, s4, 1")
    p("v_add_u32 v8, s7, v8")
    p("v_lshlrev_b32 v9, 2, v6")
    p("v_sub_u32 v9, v5, v9")
    p("v_mov_b32 v12, 0x3f80"); p("v_mov_b32 v13, 0x3f800000")
    for i in range(2):
        p(f"v_cmp_eq_u32 vcc, {2*i}, v9")
        p(f"v_cmp_eq_u32 s[14:15], {2*i+1}, v9")
        p("s_nop 1")
        p(f"v_cndmask_b32 v{16+i}, 0, v12, vcc")
        p(f"v_cndmask_b32 v{16+i}, v{16+i}, v13, s[14:15]")
    X = 64
    RAW = 24
    p("s_mov_b32 s8, 0")
    for half in range(2):
        for c in range(20):
            p(f"buffer_load_dwordx2 v[{RAW+2*c}:{RAW+2*c+1}], v8, s[44:47], s8 offen")
            p("s_add_u32 s8, s8, 65536")
        for c in range(20):
            p(f"s_waitcnt vmcnt({19-c})")
            cc = 20 * half + c
            p(f"v_mfma_f32_16x16x16_bf16 v[{X+4*cc}:{X+4*cc+3}], v[{RAW+2*c}:{RAW+2*c+1}], v[16:17], 0")
    p("s_nop 7")
    p("v_mov_b32 v20, 0"); p("v_mov_b32 v21, 0"); p("v_mov_b32 v22, 0"); p("v_mov_b32 v23, 0")
    for i in range(80):
        r = X + 2 * i
        p(f"v_pk_add_f32 v[20:21], v[20:21], v[{r}:{r+1}]")
        p(f"v_pk_fma_f32 v[22:23], v[{r}:{r+1}], v[{r}:{r+1}], v[22:23]")
    p("v_add_f32 v20, v20, v21")
    p("v_add_f32 v22, v22, v23")
    for (a, b) in (("v20", "v21"), ("v22", "v23")):
        p(f"v_mov_b32 {b}, {a}")
        p("s_nop 1")
        p(f"v_permlane16_swap_b32 {a}, {b}")
        p(f"v_add_f32 {a}, {a}, {b}")
        p(f"v_mov_b32 {b}, {a}")
        p("s_nop 1")
        p(f"v_permlane32_swap_b32 {a}, {b}")
        p(f"v_add_f32 {a}, {a}, {b}")
    ln_row_params(p, "v20", "v22", "v24", "v25", "v26", "v27")
    p("v_mul_f32 v26, v24, v25")
    p("s_cmp_lg_u32 s5, 4")
    p("s_cbranch_scc1 qkv_noxr")
    p("v_add_u32 v10, s4, v5")
    p("s_movk_i32 s9, 1280")
    p("v_mul_lo_u32 v10, v10, s9")
    p("v_lshl_add_u32 v10, v6, 3, v10")
    for c in range(40):
        r = X + 4 * c
        p(f"v_cvt_pk_bf16_f32 v{28+2*(c&1)}, v{r}, v{r+1}")
        p(f"v_cvt_pk_bf16_f32 v{29+2*(c&1)}, v{r+2}, v{r+3}")
        p(f"buffer_store_dwordx2 v[{28+2*(c&1)}:{29+2*(c&1)}], v10, s[60:63], 0 offen offset:{32*c}")
    p("qkv_noxr:")
    for s in range(20):
        for i in range(4):
            r = X + 8 * s + 2 * i
            p(f"v_fma_f32 v{32+2*i}, v{r}, v25, -v26")
            p(f"v_fma_f32 v{33+2*i}, v{r+1}, v25, -v26")
        for i in range(4):
            p(f"v_cvt_pk_bf16_f32 v{X+4*s+i}, v{32+2*i}, v{33+2*i}")
    p("s_movk_i32 s9, 1280")
    p("v_mul_lo_u32 v11, v5, s9")
    p("v_lshl_add_u32 v11, v6, 4, v11")
    p("s_mul_i32 s10, s5, 102400")
    p("v_add_u32 v10, s4, v5")
    p("v_mul_lo_u32 v12, v10, s9")
    p("v_lshl_add_u32 v12, v6, 3, v12")
    p("s_mul_i32 s11, s5, 160")
    BUF = [144, 184]
    ACC = 224
    vm = VM(p)
    def issue_half(hidx, soff):
        b = BUF[hidx & 1]
        for s in range(10):
            ks = 10 * (hidx & 1) + s
            p(f"buffer_load_dwordx4 v[{b+4*s}:{b+4*s+3}], v11, s[48:51], {soff} offen offset:{64*ks}")
            vm.issue(("w", hidx))
    def mfma_half(hidx, swapped, first):
        b = BUF[hidx & 1]
        for s in range(10):
            ks = 10 * (hidx & 1) + s
            W = f"v[{b+4*s}:{b+4*s+3}]"; Hh = f"v[{X+4*ks}:{X+4*ks+3}]"
            A, B = (W, Hh) if swapped else (Hh, W)
            C = "0" if (first and s == 0) else f"v[{ACC}:{ACC+3}]"
            p(f"v_mfma_f32_16x16x32_bf16 v[{ACC}:{ACC+3}], {A}, {B}, {C}")
    for i in range(5):
        p(f"s_add_u32 s{64+i}, s10, {20480*i}")
    p("s_mul_i32 s69, s5, 20480")
    p(f"s_add_u32 s69, s69, {40*20480}")
    issue_half(0, "s64"); issue_half(1, "s64")
    for i in range(5):
        for hf in range(2):
            hidx = 2 * i + hf
            vm.wait(("w", hidx))
            mfma_half(hidx, True, hf == 0)
            nxt = hidx + 2
            if nxt < 10:
                issue_half(nxt, f"s{64+nxt//2}")
        p("s_nop 7")
        p(f"v_cvt_pk_bf16_f32 v28, v{ACC}, v{ACC+1}")
        p(f"v_cvt_pk_bf16_f32 v29, v{ACC+2}, v{ACC+3}")
        p(f"buffer_store_dwordx2 v[28:29], v12, s[52:55], s11 offen offset:{32*i}")
        vm.issue("st")
    p("s_cmp_ge_u32 s5, 4")
    p("s_cbranch_scc1 qkv_end")
    issue_half(10, "s69"); issue_half(11, "s69")
    p("s_cmp_ge_u32 s5, 2")
    p("s_cbranch_scc1 qkv_v")
    vm2q = list(vm.q)
    for hf in range(2):
        vm.wait(("w", 10 + hf)); mfma_half(10 + hf, True, hf == 0)
    p("s_nop 7")
    p(f"v_cvt_pk_bf16_f32 v28, v{ACC}, v{ACC+1}")
    p(f"v_cvt_pk_bf16_f32 v29, v{ACC+2}, v{ACC+3}")
    p("s_cmp_eq_u32 s5, 1")
    p("s_cbranch_scc1 qkv_khi")
    p("v_lshlrev_b32 v13, 5, v10")
    p("v_lshl_add_u32 v13, v6, 3, v13")
    p("buffer_store_dwordx2 v[28:29], v13, s[56:59], 0 offen")
    p("s_endpgm")
    p("qkv_khi:")
    p("v_lshlrev_b32 v13, 3, v10")
    p(f"v_add_u32 v13, {KV_KHI}, v13")
    p("v_cmp_eq_u32 vcc, 0, v6")
    p("s_and_saveexec_b64 s[14:15], vcc")
    p("s_cbranch_execz qkv_end")
    p("buffer_store_dwordx2 v[28:29], v13, s[56:59], 0 offen")
    p("s_endpgm")
    p("qkv_v:")
    vm.q = vm2q
    for hf in range(2):
        vm.wait(("w", 10 + hf)); mfma_half(10 + hf, False, hf == 0)
    p("v_lshlrev_b32 v13, 1, v6")
    p("v_lshrrev_b32 v14, 1, v6")
    p("v_or_b32 v13, v13, v14")
    p("v_and_b32 v13, 3, v13")
    p("v_lshlrev_b32 v13, 2, v13")
    p("v_add_u32 v13, s4, v13")
    p("v_lshrrev_b32 v14, 3, v13")
    p("v_xor_b32 v14, v14, v5")
    p("v_lshlrev_b32 v14, 4, v14")
    p("v_and_b32 v13, 4, v13")
    p("v_lshl_add_u32 v14, v13, 1, v14")
    p("s_sub_u32 s12, s5, 2")
    p("s_lshl_b32 s12, s12, 4")
    p("v_add_u32 v15, s12, v5")
    p("v_lshl_add_u32 v14, v15, 12, v14")
    p(f"v_add_u32 v14, {KV_VT}, v14")
    p(f"v_cvt_pk_bf16_f32 v28, v{ACC}, v{ACC+1}")
    p(f"v_cvt_pk_bf16_f32 v29, v{ACC+2}, v{ACC+3}")
    p("v_cmp_gt_u32 vcc, 20, v15")
    p("s_and_saveexec_b64 s[14:15], vcc")
    p("s_cbranch_execz qkv_end")
    p("buffer_store_dwordx2 v[28:29], v14, s[56:59], 0 offen")
    p("qkv_end:")
    p("s_endpgm")
    return name, 228, (NWG, 256, 0)
```

```python
import sys
from common import *
from k_prep import gen_prep
from k_conv import gen_conv
from k_qkv import gen_qkv
from k_attn import gen_attn
from k_oproj import gen_oproj

def build(out, qkv={}, conv={}, prep={}, opt={}, **kw):
    ref = open('interleave_layers__ssm_conv_s4d__grouped_kv_mqa__prompt.s.ref').read()
    head = [l for l in ref.split('\n') if l.startswith(';') and '@launch' not in l and 'Override' not in l and 'grid=ceil' not in l]
    ks = {}
    body = ""
    for g in (lambda p: gen_prep(p, **prep), lambda p: gen_conv(p, **conv), lambda p: gen_qkv(p, **qkv), lambda p: gen_attn(p, **kw), lambda p: gen_oproj(p, False, **opt), lambda p: gen_oproj(p, True)):
        p = Prog()
        name, vg, geo = g(p)
        pr = p.check()
        if pr: print("!!", name, len(pr), "hazards")
        ks[name] = geo
        body += p.render() + kd(name, vg)
    order = ["prep_kernel", "conv_kernel", "qkv_kernel", "attn_kernel", "oprojt_kernel",
             "conv_kernel", "qkv_kernel", "attn_kernel", "oprojf_kernel"]
    txt = "\n".join(head) + "\n"
    for k in order:
        g, b, l = ks[k]
        txt += f"; @launch kernel={k} grid=({g},1,1) block=({b},1,1) lds={l}\n"
    txt += '.amdgcn_target "amdgcn-amd-amdhsa--gfx950"\n.text\n' + body
    open(out, 'w').write(txt)

if __name__ == '__main__':
    build(sys.argv[1] if len(sys.argv) > 1 else 'interleave_layers__ssm_conv_s4d__grouped_kv_mqa__prompt.s')
```

```python
from fw import Prog
L = 2048; D = 640; H = 32; DH = 20
WS_WT = 0x000000
WS_CS = 0x0F0000
WS_KMAX = 0x0F8000
WS_WOT = 0x100000
WS_KREV = 0x200000
KREV_STRIDE = 4160
WS_XTA = 0x500000
WS_XTB = 0x800000
WS_STATS = 0xB00000
WS_Q = 0xC00000
WS_KV = 0xF00000
KV_KHI = 65536
KV_VT = 65536 + 16384
KV_SIZE = 163840
WS_O = 0x1000000
WS_XR = 0x1300000
XSZ = L * D * 2
LOG2E = 0x3fb8aa3b
INV2PI = 0x3e22f983

def srd(p, s, base, off, size):
    p(f"s_add_u32 s{s}, s{base}, {off}")
    p(f"s_addc_u32 s{s+1}, s{base+1}, 0")
    p(f"s_mov_b32 s{s+2}, {size}")
    p(f"s_mov_b32 s{s+3}, 0x00020000")

def header(p, name):
    p.raw(f".globl {name}\n.p2align 8\n.type {name},@function\n{name}:")

def kd(name, vgpr, sgpr=102):
    acc = (vgpr + 3) // 4 * 4
    return f""".section .rodata,"a"
.p2align 6
.amdhsa_kernel {name}
  .amdhsa_next_free_vgpr {vgpr}
  .amdhsa_next_free_sgpr {sgpr}
  .amdhsa_accum_offset {acc}
  .amdhsa_group_segment_fixed_size 0
  .amdhsa_kernarg_size 120
  .amdhsa_user_sgpr_count 2
  .amdhsa_user_sgpr_kernarg_segment_ptr 1
  .amdhsa_system_sgpr_workgroup_id_x 1
.end_amdhsa_kernel
.text
"""

def load_ptrs(p):
    p("s_load_dwordx16 s[16:31], s[0:1], 0")
    p("s_load_dwordx8 s[32:39], s[0:1], 64")
    p("s_load_dwordx2 s[40:41], s[0:1], 112")
    p("s_load_dwordx2 s[42:43], s[0:1], 96")

def bf16r(p, dst, src):
    p(f"v_cvt_pk_bf16_f32 {dst}, {src}, {src}")
    p(f"v_lshlrev_b32 {dst}, 16, {dst}")

def row16_sum(p, regs):
    for sh in (1, 2, 4, 8):
        for r in regs:
            p(f"v_add_f32_dpp {r}, {r}, {r} row_ror:{sh} row_mask:0xf bank_mask:0xf")
        if len(regs) < 3:
            p("s_nop 1")

def ln_row_params(p, vsum, vsq, vm, vrs, t0, t1):
    p(f"v_mul_f32 {vm}, 0x3acccccd, {vsum}")
    p(f"v_mul_f32 {t0}, 0x3acccccd, {vsq}")
    p(f"v_fma_f32 {t0}, -{vm}, {vm}, {t0}")
    p(f"v_max_f32 {t0}, 0, {t0}")
    bf16r(p, t0, t0)
    p(f"v_add_f32 {t0}, 0x3727c5ac, {t0}")
    bf16r(p, t0, t0)
    p(f"v_sqrt_f32 {t0}, {t0}")
    bf16r(p, vm, vm)
    bf16r(p, t0, t0)
    p(f"v_rcp_f32 {vrs}, {t0}")
    p("s_nop 0")


def tile_swz_voffs(p, vE, vO, vlane, t0, t1, RS):
    p(f"v_lshrrev_b32 {t0}, 3, {vlane}")
    p(f"v_mul_u32_u24 {vE}, {RS}, {t0}")
    p(f"v_bfe_u32 {t0}, {vlane}, 1, 2")
    p(f"v_bfe_u32 {t1}, {vlane}, 4, 1")
    p(f"v_xor_b32 {t0}, {t0}, {t1}")
    p(f"v_and_b32 {t1}, 1, {vlane}")
    p(f"v_lshl_or_b32 {t0}, {t0}, 1, {t1}")
    p(f"v_lshl_add_u32 {vO}, {t0}, 4, {vE}")
    p(f"v_xor_b32 {vO}, 64, {vO}") if RS % 128 == 0 else None
    p(f"v_lshl_add_u32 {vE}, {t0}, 4, {vE}")

def tr_addr(p, va, vlane, sunit, t0, t1):
    p(f"v_bfe_u32 {t0}, {vlane}, 2, 2")
    p(f"v_bfe_u32 {t1}, {vlane}, 4, 2")
    p(f"v_lshl_add_u32 {va}, {t1}, 3, {t0}")
    p(f"v_lshlrev_b32 {va}, 7, {va}")
    p(f"v_lshrrev_b32 {t0}, 1, {t0}")
    p(f"v_and_b32 {t1}, 1, {t1}")
    p(f"v_lshl_or_b32 {t0}, {t1}, 1, {t0}")
    p(f"v_xor_b32 {t0}, {sunit}, {t0}")
    p(f"v_lshl_add_u32 {va}, {t0}, 5, {va}")
    p(f"v_and_b32 {t1}, 3, {vlane}")
    p(f"v_lshl_add_u32 {va}, {t1}, 3, {va}")

class VM:
    def __init__(self, p): self.p = p; self.q = []
    def issue(self, tag): self.q.append(tag)
    def wait(self, tag):
        idx = max(i for i, t in enumerate(self.q) if t == tag)
        n = len(self.q) - 1 - idx
        assert n <= 63
        self.p(f"s_waitcnt vmcnt({n})")
        self.q = self.q[idx + 1:]
    def wait_all(self):
        self.p("s_waitcnt vmcnt(0)"); self.q = []
```

```python
from common import *
import struct, math

def f2u(x): return struct.unpack('<I', struct.pack('<f', x))[0]

def gen_attn(p, force_fb=False, ofrag=True):
    name = "attn_kernel"
    header(p, name)
    NWG = 256
    p(f"s_cmp_ge_u32 s2, {NWG}")
    p("s_cbranch_scc1 attn_end")
    load_ptrs(p)
    p("v_lshrrev_b32 v2, 6, v0")
    p("v_and_b32 v1, 63, v0")
    p("v_and_b32 v3, 31, v0")
    p("v_readfirstlane_b32 s3, v2")
    p("v_bfe_u32 v4, v0, 5, 1")
    p("v_lshlrev_b32 v5, 4, v1")
    p("s_lshl_b32 s4, s2, 3")
    p("s_add_u32 s4, s4, s3")
    p("s_and_b32 s5, s4, 31")
    p("s_lshr_b32 s6, s4, 5")
    p("s_waitcnt lgkmcnt(0)")
    srd(p, 44, 40, WS_Q, XSZ)
    srd(p, 48, 40, WS_KV, KV_SIZE)
    srd(p, 52, 40, WS_O, XSZ)
    srd(p, 56, 40, WS_KMAX, 64)
    p("s_lshl_b32 s8, s6, 5")
    p("v_add_u32 v6, s8, v3")
    p("s_movk_i32 s9, 1280")
    p("v_mul_lo_u32 v7, v6, s9")
    p("s_mul_i32 s10, s5, 40")
    p("v_add_u32 v7, s10, v7")
    p("v_lshl_add_u32 v57, v4, 4, v7")
    p("buffer_load_dwordx4 v[8:11], v57, s[44:47], 0 offen")
    p("v_mov_b32 v58, 0x7fffffff")
    p("v_cmp_eq_u32 vcc, 0, v4")
    p("v_mov_b32 v59, 0")
    p("s_nop 0")
    p("v_cndmask_b32 v57, v58, v7, vcc")
    p("buffer_load_dwordx2 v[12:13], v57, s[44:47], 0 offen offset:32")
    p("buffer_load_dword v60, v59, s[56:59], 0 offen")
    p("s_lshl_b32 s12, s3, 10")
    p("s_lshr_b32 s13, s3, 1")
    p("s_lshl_b32 s13, s13, 12")
    p("s_and_b32 s14, s3, 1")
    p("s_lshl_b32 s14, s14, 10")
    p("s_add_u32 s13, s13, s14")
    def dma(sreg, piece):
        p(f"s_add_u32 s15, {sreg}, {1024*piece}")
        p("s_mov_b32 m0, s15")
        p("s_nop 0")
        p("buffer_load_dwordx4 v5, s[48:51], s15 offen lds")
    for st in range(2):
        for j in range(4): dma("s12", 32 * st + 8 * j)
        dma("s12", 64 + 8 * st)
        for j in range(5): dma("s13", 80 + 16 * j + 2 * st)
    p("v_mov_b32 v15, 0")
    for r in (26, 30): p(f"v_mov_b32 v{r}, 0x3f80")
    for r in (27, 31): p(f"v_mov_b32 v{r}, 0")
    p("v_mov_b32 v58, 0x3f803f80")
    p("v_cmp_eq_u32 vcc, 20, v3")
    p("s_nop 1")
    for r in range(32, 48):
        p(f"v_cndmask_b32 v{r}, 0, v58, vcc")
    p("s_mov_b32 s16, 0x000fffff")
    p("s_mov_b32 s17, 0x000fffff")
    def addr_init():
        p("v_lshlrev_b32 v128, 5, v3")
        p("v_lshl_add_u32 v128, v4, 4, v128")
        p("v_lshlrev_b32 v129, 3, v3")
        p(f"v_add_u32 v129, {KV_KHI}, v129")
        p("v_and_b32 v61, 15, v3")
        for tt in range(4):
            for mf in range(2):
                r = 130 + 2 * tt + mf
                p(f"v_add_u32 v{r}, {4*tt+2*mf}, v4")
                p(f"v_xor_b32 v{r}, v{r}, v61")
                p(f"v_lshlrev_b32 v{r}, 4, v{r}")
                p(f"v_lshl_add_u32 v{r}, v3, 12, v{r}")
                p(f"v_add_u32 v{r}, {KV_VT}, v{r}")
        for r in range(96, 112): p(f"v_mov_b32 v{r}, 0")
    addr_init()
    for r in range(48, 56): p(f"v_mov_b32 v{r}, 0")
    p("s_waitcnt vmcnt(20)")
    first = True
    for r in (8, 9, 10, 11, 12, 13):
        p(f"v_lshlrev_b32 v56, 16, v{r}")
        p(f"v_and_b32 v57, 0xffff0000, v{r}")
        if first: p("v_mul_f32 v62, v56, v56"); first = False
        else: p("v_fma_f32 v62, v56, v56, v62")
        p("v_fma_f32 v62, v57, v57, v62")
    p("v_mov_b32 v63, v62")
    p("s_nop 1")
    p("v_permlane32_swap_b32 v62, v63")
    p("v_add_f32 v62, v62, v63")
    p("v_mul_f32 v62, v62, v60")
    p("v_sqrt_f32 v62, v62")
    p("v_cmp_eq_u32 vcc, 0, v4")
    p("v_mul_f32 v62, 0x3f810000, v62")
    p("v_add_u32 v62, 0xffff, v62")
    p("v_lshrrev_b32 v62, 16, v62")
    p("v_or_b32 v62, 0x8000, v62")
    p("v_cndmask_b32 v14, 0, v62, vcc")
    p("s_waitcnt vmcnt(10)")
    p("s_barrier")

    KL = [16, 20]; KH = [24, 28]; VA = [32, 40]; S = [64, 80]
    def readK(tt, buf):
        p(f"ds_read_b128 v[{KL[buf]}:{KL[buf]+3}], v128 offset:{1024*tt}")
        p(f"ds_read_b64 v[{KH[buf]}:{KH[buf]+1}], v129 offset:{256*tt}")
    def readV(tt, buf):
        p("s_mov_b64 exec, s[16:17]")
        for mf in range(2):
            r = 130 + 2 * (tt & 3) + mf
            p(f"ds_read_b128 v[{VA[buf]+4*mf}:{VA[buf]+4*mf+3}], v{r} offset:{256*(tt>>2)}")
        p("s_mov_b64 exec, -1")
    def mS(buf, hi):
        s = S[buf]
        if not hi: p(f"v_mfma_f32_32x32x16_bf16 v[{s}:{s+15}], v[{KL[buf]}:{KL[buf]+3}], v[8:11], 0")
        else: p(f"v_mfma_f32_32x32x16_bf16 v[{s}:{s+15}], v[{KH[buf]}:{KH[buf]+3}], v[12:15], v[{s}:{s+15}]")
    def mO(buf, mf):
        p(f"v_mfma_f32_32x32x16_bf16 v[96:111], v[{VA[buf]+4*mf}:{VA[buf]+4*mf+3}], v[{48+4*mf}:{51+4*mf}], v[96:111]")
    def exps(buf, a):
        for i in range(4 * a, 4 * a + 4):
            p(f"v_exp_f32 v{S[buf]+i}, v{S[buf]+i}")
    def advance():
        p("v_add_u32 v128, 4096, v128")
        p("v_add_u32 v129, 1024, v129")
        for r in range(130, 138): p(f"v_add_u32 v{r}, 256, v{r}")

    readK(0, 0); readK(1, 1)
    p("s_waitcnt lgkmcnt(2)")
    mS(0, False); mS(0, True)
    p("s_mov_b32 s11, 0")
    p("s_nop 7")
    p("attn_loop:")
    p("s_cmp_lg_u32 s11, 7")
    p("s_cbranch_scc1 attn_nostage")
    p("s_waitcnt vmcnt(0)")
    p("s_barrier")
    p("attn_nostage:")
    for tt in range(4):
        b = tt & 1
        p("s_waitcnt lgkmcnt(2)")
        mO(b ^ 1, 0)
        exps(b, 0)
        mO(b ^ 1, 1)
        readV(tt, b)
        exps(b, 1)
        p("s_waitcnt lgkmcnt(2)")
        mS(b ^ 1, False)
        exps(b, 2)
        mS(b ^ 1, True)
        readK(tt + 2, b)
        exps(b, 3)
        if tt == 3: advance()
        else: p("s_nop 0")
        for i in range(8):
            p(f"v_cvt_pk_bf16_f32 v{48+i}, v{S[b]+2*i}, v{S[b]+2*i+1}")
    p("s_add_u32 s11, s11, 1")
    p("s_cmp_lt_u32 s11, 16")
    p("s_cbranch_scc1 attn_loop")
    p("s_waitcnt lgkmcnt(0)")
    mO(1, 0); mO(1, 1)
    p("attn_fin:")
    p("s_nop 15")
    p("s_nop 3")
    p("v_mov_b32 v58, v104")
    p("v_mov_b32 v59, v104")
    p("s_nop 1")
    p("v_permlane32_swap_b32 v58, v59")
    p(f"v_mov_b32 v57, {0x7f000000 if force_fb else f2u(2.0**-60)}")
    p("s_cmp_eq_u32 s11, 16")
    p("v_cmp_nge_f32 vcc, v59, v57")
    p("s_cbranch_scc0 attn_out")
    p("s_cbranch_vccnz attn_fb")
    p("attn_out:")
    p("v_rcp_f32 v59, v59")
    p("s_nop 0")
    for r in range(96, 108):
        p(f"v_mul_f32 v{r}, v{r}, v59")
    for i in range(6):
        p(f"v_cvt_pk_bf16_f32 v{48+i}, v{96+2*i}, v{97+2*i}")
    if not ofrag:
        p("v_lshl_add_u32 v57, v4, 3, v7")
        p("buffer_store_dwordx2 v[48:49], v57, s[52:55], 0 offen")
        p("buffer_store_dwordx2 v[50:51], v57, s[52:55], 0 offen offset:16")
        p("v_cmp_eq_u32 vcc, 0, v4")
        p("s_and_saveexec_b64 s[14:15], vcc")
        p("s_cbranch_execz attn_end")
        p("buffer_store_dwordx2 v[52:53], v57, s[52:55], 0 offen offset:32")
    else:
        p("v_lshrrev_b32 v56, 4, v6")
        p("v_mul_u32_u24 v56, 20480, v56")
        p("v_and_b32 v57, 15, v6")
        p("v_lshl_add_u32 v56, v57, 4, v56")
        p("s_mul_i32 s10, s5, 20")
        p("v_lshl_add_u32 v57, v4, 2, s10")
        for q4 in range(3):
            if q4: p("v_add_u32 v57, 8, v57")
            p("v_lshrrev_b32 v60, 3, v57")
            p("v_lshl_add_u32 v60, v60, 8, v56")
            p("v_bfe_u32 v61, v57, 2, 1")
            p("v_lshl_add_u32 v60, v61, 3, v60")
            if q4 == 2:
                p("v_cmp_eq_u32 vcc, 0, v4")
                p("s_and_saveexec_b64 s[14:15], vcc")
                p("s_cbranch_execz attn_end")
            p(f"buffer_store_dwordx2 v[{48+2*q4}:{49+2*q4}], v60, s[52:55], 0 offen")
    p("s_endpgm")

    p("attn_fb:")
    addr_init()
    p("v_mov_b32 v14, 0")
    p("v_mov_b32 v56, 0xff800000")
    p("s_mov_b32 s11, 32")
    p("attn_fb_loop:")
    for tt in range(4):
        readK(tt, 0)
        readV(tt, 0)
        p("s_waitcnt lgkmcnt(0)")
        mS(0, False); mS(0, True)
        p("s_nop 15")
        p("s_nop 3")
        R = lambda i: f"v{64+i}"
        p(f"v_max3_f32 v58, {R(0)}, {R(1)}, {R(2)}")
        p(f"v_max3_f32 v59, {R(3)}, {R(4)}, {R(5)}")
        p(f"v_max3_f32 v60, {R(6)}, {R(7)}, {R(8)}")
        p(f"v_max3_f32 v61, {R(9)}, {R(10)}, {R(11)}")
        p(f"v_max3_f32 v62, {R(12)}, {R(13)}, {R(14)}")
        p(f"v_max3_f32 v58, v58, v59, {R(15)}")
        p(f"v_max3_f32 v60, v60, v61, v62")
        p(f"v_max3_f32 v58, v58, v60, v56")
        p("v_mov_b32 v59, v58")
        p("s_nop 1")
        p("v_permlane32_swap_b32 v58, v59")
        p("v_max_f32 v58, v58, v59")
        p("v_sub_f32 v59, v56, v58")
        p("v_exp_f32 v59, v59")
        p("v_mov_b32 v56, v58")
        for r in range(96, 108):
            p(f"v_mul_f32 v{r}, v{r}, v59")
        for i in range(16):
            p(f"v_sub_f32 {R(i)}, {R(i)}, v56")
        for i in range(16):
            p(f"v_exp_f32 {R(i)}, {R(i)}")
        p("s_nop 0")
        for i in range(8):
            p(f"v_cvt_pk_bf16_f32 v{48+i}, {R(2*i)}, {R(2*i+1)}")
        p("s_nop 1")
        mO(0, 0); mO(0, 1)
    advance()
    p("s_add_u32 s11, s11, 1")
    p("s_cmp_lt_u32 s11, 48")
    p("s_cbranch_scc1 attn_fb_loop")
    p("s_branch attn_fin")
    p("attn_end:")
    p("s_endpgm")
    return name, 144, (NWG, 512, KV_SIZE)
```

```python
from common import *

def gen_conv(p):
    name = "conv_kernel"
    header(p, name)
    NWG = 160
    UREG = 7680; CS = 4160; WREG = UREG + 4 * CS; WBASE = 16384
    p(f"s_cmp_ge_u32 s2, {NWG}")
    p("s_cbranch_scc1 conv_end")
    load_ptrs(p)
    p("v_lshrrev_b32 v2, 6, v0")
    p("v_and_b32 v1, 63, v0")
    p("v_and_b32 v3, 31, v0")
    p("v_readfirstlane_b32 s3, v2")
    p("v_bfe_u32 v4, v0, 5, 1")
    p("s_lshl_b32 s4, s2, 2")
    p("s_add_u32 s4, s4, s3")
    p("s_lshl_b32 s5, s4, 1")
    p("s_and_b32 s5, s5, 0xfffffffc")
    p("s_waitcnt lgkmcnt(0)")
    srd(p, 44, 40, WS_XTA, XSZ)
    srd(p, 48, 40, WS_XTB, XSZ)
    srd(p, 52, 40, WS_KREV, 640 * KREV_STRIDE)
    srd(p, 56, 40, WS_STATS, 2048 * 8)
    p("s_load_dword s6, s[28:29], s5")
    p("v_lshlrev_b32 v12, 3, v0")
    for k in range(8):
        p(f"buffer_load_dwordx2 v[{64+2*k}:{65+2*k}], v12, s[56:59], 0 offen offset:{2048*k}" if k < 2 else
          f"buffer_load_dwordx2 v[{64+2*k}:{65+2*k}], v12, s[56:59], s{60+k//2} offen offset:{2048*(k%2)}")
        if k == 0:
            for q in range(1, 4): p(f"s_movk_i32 s{60+q}, {4096*q}")
    p("s_lshl_b32 s7, s4, 12")
    p(f"s_mul_i32 s8, s4, {KREV_STRIDE}")
    p("v_lshlrev_b32 v6, 4, v1")
    for k in range(4):
        p(f"buffer_load_dwordx4 v[{128+4*k}:{131+4*k}], v6, s[44:47], s7 offen offset:{1024*k}")
    p("s_add_u32 s12, s8, 4096")
    for k in range(5):
        for sh in range(3):
            r = 160 + 12 * k + 4 * sh
            if k < 4: p(f"buffer_load_dwordx4 v[{r}:{r+3}], v6, s[52:55], s8 offen offset:{1024*k+4*sh}")
            else: p(f"buffer_load_dwordx4 v[{r}:{r+3}], v6, s[52:55], s12 offen offset:{4*sh}")
    p(f"s_mul_i32 s9, s3, {WREG}")
    p(f"s_add_u32 s9, s9, {WBASE}")
    p(f"s_add_u32 s10, s9, {UREG}")
    p("v_add_u32 v7, s9, v6")
    for i in range(4): p(f"v_mov_b32 v{8+i}, 0")
    for k in range(3):
        p(f"ds_write_b128 v7, v[8:11] offset:{1024*k}")
    for k in range(8):
        b = 64 + 2 * k
        p(f"s_waitcnt vmcnt({(7-k)+19})")
        ln_row_params(p, f"v{b}", f"v{b+1}", "v80", "v81", "v82", "v83")
        p(f"ds_write_b64 v12, v[80:81] offset:{2048*k}")
    p("s_waitcnt lgkmcnt(0)")
    p("s_barrier")
    p("v_lshlrev_b32 v14, 6, v1")
    for k in range(4):
        for i in range(4):
            p(f"ds_read_b128 v[{64+16*k+4*i}:{67+16*k+4*i}], v14 offset:{4096*k+16*i}")
    p("v_add_u32 v13, s10, v6")
    for k in range(5):
        r = 160 + 12 * k
        p(f"s_waitcnt vmcnt({(4-k)*3})")
        for i in range(4):
            p(f"v_alignbit_b32 v{16+i}, v{r+4+i}, v{r+i}, 16")
            p(f"v_alignbit_b32 v{20+i}, v{r+8+i}, v{r+4+i}, 16")
        if k == 4:
            p("v_cmp_gt_u32 vcc, 4, v1")
            p("s_and_saveexec_b64 s[14:15], vcc")
        p(f"ds_write_b128 v13, v[{r}:{r+3}] offset:{1024*k}")
        p(f"ds_write_b128 v13, v[16:19] offset:{1024*k+CS}")
        p(f"ds_write_b128 v13, v[{r+4}:{r+7}] offset:{1024*k+2*CS}")
        p(f"ds_write_b128 v13, v[20:23] offset:{1024*k+3*CS}")
        if k == 4: p("s_mov_b64 exec, s[14:15]")
    p("s_and_b32 s11, s4, 1")
    p("s_lshl_b32 s11, s11, 4")
    p("s_lshr_b32 s6, s6, s11")
    p("s_lshl_b32 s6, s6, 16")
    p("v_lshrrev_b32 v15, 2, v1")
    p("v_mul_u32_u24 v15, 80, v15")
    p("v_and_b32 v16, 3, v1")
    p("v_lshl_add_u32 v15, v16, 4, v15")
    p("v_add_u32 v15, s9, v15")
    p("s_waitcnt lgkmcnt(0)")
    for k in range(4):
        for i in range(4):
            x = f"v{128+4*k+i}"; sb = 64 + 16 * k + 4 * i
            p(f"v_lshlrev_b32 v20, 16, {x}")
            p(f"v_and_b32 v21, 0xffff0000, {x}")
            p(f"v_sub_f32 v20, v20, v{sb}")
            p(f"v_sub_f32 v21, v21, v{sb+2}")
            p(f"v_cvt_pk_bf16_f32 v22, v20, v21")
            p(f"v_lshlrev_b32 v20, 16, v22")
            p(f"v_and_b32 v21, 0xffff0000, v22")
            p(f"v_mul_f32 v20, v20, v{sb+1}")
            p(f"v_mul_f32 v21, v21, v{sb+3}")
            p(f"v_cvt_pk_bf16_f32 v{24+i}, v20, v21")
        p(f"ds_write_b128 v15, v[24:27] offset:{2480+1280*k}")
    p("v_mul_u32_u24 v60, 80, v3")
    p("v_lshl_add_u32 v60, v4, 4, v60")
    p("v_add_u32 v60, s9, v60")
    p("v_and_b32 v61, 3, v3")
    p("v_sub_u32 v61, 3, v61")
    p(f"v_mul_u32_u24 v61, {CS}, v61")
    p("v_lshrrev_b32 v62, 2, v3")
    p("v_lshlrev_b32 v62, 3, v62")
    p("v_sub_u32 v62, 56, v62")
    p("v_add_u32 v61, v61, v62")
    p("v_lshl_add_u32 v61, v4, 4, v61")
    p("v_add_u32 v61, s10, v61")
    p("v_lshlrev_b32 v5, 6, v3")
    p("v_lshl_add_u32 v5, v4, 3, v5")
    for a in range(2):
        for q4 in range(4):
            r = 160 + 2 * (4 * a + q4)
            p(f"buffer_load_dwordx2 v[{r}:{r+1}], v5, s[44:47], s7 offen offset:{2048*a+16*q4}")
    for i in range(32): p(f"v_mov_b32 v{128+i}, 0")
    p("s_waitcnt lgkmcnt(0)")
    NBUF = 3
    def reads(s):
        base = 64 + 24 * (s % NBUF) if (s % NBUF) < 2 else 176
        n = 0
        for hf in range(2):
            p(f"ds_read_b64 v[{base+8+4*hf}:{base+8+4*hf+1}], v61 offset:{64*s+32*hf}"); n += 1
            p(f"ds_read_b64 v[{base+8+4*hf+2}:{base+8+4*hf+3}], v61 offset:{64*s+32*hf+8}"); n += 1
            p(f"ds_read_b128 v[{base+4*hf}:{base+4*hf+3}], v60 offset:{80*s+32*hf}"); n += 1
            if s >= 32:
                p(f"ds_read_b128 v[{base+16+4*hf}:{base+16+4*hf+3}], v60 offset:{80*(s-32)+32*hf}"); n += 1
        return n
    cnt = {}
    cnt[0] = reads(0); cnt[1] = reads(1)
    for s in range(64):
        if s + 2 < 64: cnt[s + 2] = reads(s + 2)
        n = cnt.get(s + 1, 0) + cnt.get(s + 2, 0)
        p(f"s_waitcnt lgkmcnt({min(n,15)})")
        base = 64 + 24 * (s % NBUF) if (s % NBUF) < 2 else 176
        for hf in range(2):
            A = f"v[{base+8+4*hf}:{base+8+4*hf+3}]"
            p(f"v_mfma_f32_32x32x16_bf16 v[144:159], {A}, v[{base+4*hf}:{base+4*hf+3}], v[144:159]")
            if s >= 32:
                p(f"v_mfma_f32_32x32x16_bf16 v[128:143], {A}, v[{base+16+4*hf}:{base+16+4*hf+3}], v[128:143]")
    p("v_mul_u32_u24 v6, 80, v3")
    p("v_lshl_add_u32 v6, v4, 3, v6")
    p("v_add_u32 v6, s9, v6")
    for a in range(2):
        for q4 in range(4):
            r = 80 + 2 * (4 * a + q4)
            p(f"ds_read_b64 v[{r}:{r+1}], v6 offset:{2480+2560*a+16*q4}")
    p("v_lshrrev_b32 v7, 1, v3")
    p("v_mul_u32_u24 v7, 81920, v7")
    p("v_and_b32 v8, 1, v3")
    p("v_lshl_add_u32 v7, v8, 6, v7")
    p("v_lshl_add_u32 v7, v4, 3, v7")
    p("s_lshl_b32 s12, s4, 7")
    p(f"s_add_u32 s13, s12, {16*81920}")
    p("s_nop 7")
    p("s_waitcnt vmcnt(0) lgkmcnt(0)")
    for a in range(2):
        for q4 in range(4):
            xr = 160 + 2 * (4 * a + q4); hr = 80 + 2 * (4 * a + q4)
            for j in range(4):
                y = f"v{128+16*a+4*q4+j}"
                hsrc = f"v{hr+j//2}"; xsrc = f"v{xr+j//2}"
                if j % 2 == 0:
                    p(f"v_lshlrev_b32 v20, 16, {hsrc}")
                    p(f"v_lshlrev_b32 v21, 16, {xsrc}")
                else:
                    p(f"v_and_b32 v20, 0xffff0000, {hsrc}")
                    p(f"v_and_b32 v21, 0xffff0000, {xsrc}")
                p(f"v_mul_f32 v20, s6, v20")
                bf16r(p, "v20", "v20")
                bf16r(p, y, y)
                p(f"v_add_f32 v20, v20, {y}")
                bf16r(p, "v20", "v20")
                p(f"v_add_f32 v{24+j}, v20, v21")
            p(f"v_cvt_pk_bf16_f32 v28, v24, v25")
            p(f"v_cvt_pk_bf16_f32 v29, v26, v27")
            p(f"buffer_store_dwordx2 v[28:29], v7, s[48:51], s{12+a} offen offset:{16*q4}")
    p("conv_end:")
    p("s_endpgm")
    return name, 220, (NWG, 256, WBASE + 4 * WREG)
```

```python
from common import *

def gen_oproj(p, final):
    name = "oprojf_kernel" if final else "oprojt_kernel"
    pre = "opf" if final else "opt"
    header(p, name)
    NWG = 256
    p(f"s_cmp_ge_u32 s2, {NWG}")
    p(f"s_cbranch_scc1 {pre}_end")
    load_ptrs(p)
    p("v_lshrrev_b32 v2, 6, v0")
    p("v_and_b32 v1, 63, v0")
    p("v_and_b32 v5, 15, v0")
    p("v_readfirstlane_b32 s3, v2")
    p("v_bfe_u32 v6, v0, 4, 2")
    p("v_lshlrev_b32 v7, 4, v1")
    p("s_lshr_b32 s4, s2, 3")
    p("s_and_b32 s5, s2, 7")
    p("s_waitcnt lgkmcnt(0)")
    srd(p, 44, 40, WS_O, XSZ)
    srd(p, 48, 40, WS_WOT, 640 * 1280)
    if final:
        srd(p, 52, 40, WS_XR, XSZ)
        srd(p, 56, 42, 0, XSZ)
    else:
        srd(p, 52, 40, WS_XTB, XSZ)
        srd(p, 56, 40, WS_XTA, XSZ)
        srd(p, 60, 40, WS_STATS, 2048 * 8)
        srd(p, 64, 40, WS_KMAX, 64)
    vm = VM(p)
    p("s_mul_i32 s9, s3, 25600")
    p("s_mul_i32 s8, s5, 102400")
    p("s_add_u32 s8, s8, s9")
    for k in range(25):
        p(f"s_add_u32 s10, s9, {1024*k}")
        p(f"s_add_u32 s11, s8, {1024*k}")
        p("s_mov_b32 m0, s10")
        p("s_nop 0")
        p(f"buffer_load_dwordx4 v7, s[48:51], s11 offen lds")
        vm.issue("w")
    X = 64
    p("s_lshl_b32 s12, s4, 2")
    p("s_add_u32 s12, s12, s3")
    p("s_mul_i32 s13, s12, 20480")
    for q in range(1, 5): p(f"s_add_u32 s{13+q}, s13, {4096*q}")
    for ks in range(20):
        p(f"buffer_load_dwordx4 v[{X+4*ks}:{X+4*ks+3}], v7, s[44:47], s{13+ks//4} offen offset:{1024*(ks%4)}")
        vm.issue("a")
    p("s_lshl_b32 s12, s12, 4")
    if final:
        p("v_add_u32 v8, s12, v5")
        p("s_movk_i32 s10, 1280")
        p("v_mul_lo_u32 v8, v8, s10")
        p("v_lshl_add_u32 v12, v6, 3, v8")
        p("s_mul_i32 s10, s5, 160")
        for i in range(5):
            p(f"buffer_load_dwordx2 v[{32+2*i}:{33+2*i}], v12, s[52:55], s10 offen offset:{32*i}")
            vm.issue("x")
    else:
        p("v_lshlrev_b32 v12, 7, v5")
        p("v_lshl_add_u32 v12, v6, 3, v12")
        p("s_mul_i32 s10, s4, 81920")
        p("s_mul_i32 s11, s5, 10240")
        p("s_add_u32 s10, s10, s11")
        p("s_lshl_b32 s11, s3, 5")
        p("s_add_u32 s10, s10, s11")
        for i in range(5):
            p(f"buffer_load_dwordx2 v[{32+2*i}:{33+2*i}], v12, s[52:55], s10 offen offset:{2048*i}" if i < 2 else
              f"buffer_load_dwordx2 v[{32+2*i}:{33+2*i}], v12, s[52:55], s18 offen offset:{2048*(i-2)}" if i < 4 else
              f"buffer_load_dwordx2 v[{32+2*i}:{33+2*i}], v12, s[52:55], s19 offen")
            vm.issue("x")
            if i == 0:
                p("s_add_u32 s18, s10, 4096"); p("s_add_u32 s19, s10, 8192")
        p("v_lshlrev_b32 v13, 12, v5")
        p("v_lshl_add_u32 v13, v6, 3, v13")
        p("s_lshl_b32 s11, s12, 1")
        p("v_add_u32 v13, s11, v13")
        p("s_mul_i32 s20, s5, 327680")
        for i in range(1, 5): p(f"s_add_u32 s{20+i}, s20, {65536*i}")
        for i in range(8): p(f"v_mov_b32 v{16+i}, 0")
    p("v_add_u32 v29, 61440, v7")
    WB = 144; NB = 8; ACC = [176, 180]
    vm.wait("w")
    p("s_barrier")
    vm.wait("x")
    for j in range(5):
        acc = ACC[j & 1]
        va, off0 = ("v7", 20480 * j) if j < 3 else ("v29", 20480 * (j - 3))
        PF = 6
        for s in range(PF):
            p(f"ds_read_b128 v[{WB+4*(s%NB)}:{WB+4*(s%NB)+3}], {va} offset:{off0+1024*s}")
        for s in range(20):
            if s + PF < 20:
                q = s + PF
                p(f"ds_read_b128 v[{WB+4*(q%NB)}:{WB+4*(q%NB)+3}], {va} offset:{off0+1024*q}")
            p(f"s_waitcnt lgkmcnt({min(PF, 19-s)})")
            W = f"v[{WB+4*(s%NB)}:{WB+4*(s%NB)+3}]"; Hh = f"v[{X+4*s}:{X+4*s+3}]"
            A, B = (W, Hh) if final else (Hh, W)
            p(f"v_mfma_f32_16x16x32_bf16 v[{acc}:{acc+3}], {A}, {B}, {'0' if s==0 else f'v[{acc}:{acc+3}]'}")
        p("s_nop 7")
        for i in range(4):
            a = f"v{acc+i}"
            bf16r(p, a, a)
            src = f"v{32+2*j+i//2}"
            if i % 2 == 0: p(f"v_lshlrev_b32 v24, 16, {src}")
            else: p(f"v_and_b32 v24, 0xffff0000, {src}")
            p(f"v_add_f32 v{44+i}, v24, {a}")
        p("v_cvt_pk_bf16_f32 v30, v44, v45")
        p("v_cvt_pk_bf16_f32 v31, v46, v47")
        if final:
            p(f"buffer_store_dwordx2 v[30:31], v12, s[56:59], s10 offen offset:{32*j}")
        else:
            p(f"buffer_store_dwordx2 v[30:31], v13, s[56:59], s{20+j} offen")
            for i in range(4):
                src = f"v{30+i//2}"
                if i % 2 == 0: p(f"v_lshlrev_b32 v24, 16, {src}")
                else: p(f"v_and_b32 v24, 0xffff0000, {src}")
                p(f"v_add_f32 v{16+i}, v{16+i}, v24")
                p(f"v_fma_f32 v{20+i}, v24, v24, v{20+i}")
    if not final:
        row16_sum(p, [f"v{16+i}" for i in range(8)])
        p("v_lshlrev_b32 v14, 2, v6")
        p("v_add_u32 v14, s12, v14")
        p("v_lshlrev_b32 v14, 3, v14")
        p("v_mov_b32 v15, 0")
        p("v_cmp_eq_u32 vcc, 0, v5")
        p("s_and_saveexec_b64 s[14:15], vcc")
        p(f"s_cbranch_execz {pre}_end")
        for i in range(4):
            p(f"buffer_atomic_add_f32 v{16+i}, v14, s[60:63], 0 offen offset:{8*i}")
            p(f"buffer_atomic_add_f32 v{20+i}, v14, s[60:63], 0 offen offset:{8*i+4}")
        p("s_cmp_lg_u32 s2, 0")
        p(f"s_cbranch_scc1 {pre}_end")
        p("buffer_store_dword v15, v15, s[64:67], 0 offen")
    p(f"{pre}_end:")
    p("s_endpgm")
    return name, 184, (NWG, 256, 102400)
```

```python
from common import *

def split_hilo(p, X, hi, lo, tmp):
    for i in range(4):
        p(f"v_cvt_pk_bf16_f32 {hi[i]}, {X[2*i]}, {X[2*i+1]}")
    for i in range(4):
        p(f"v_lshlrev_b32 {tmp[0]}, 16, {hi[i]}")
        p(f"v_and_b32 {tmp[1]}, 0xffff0000, {hi[i]}")
        p(f"v_sub_f32 {X[2*i]}, {X[2*i]}, {tmp[0]}")
        p(f"v_sub_f32 {X[2*i+1]}, {X[2*i+1]}, {tmp[1]}")
        p(f"v_cvt_pk_bf16_f32 {lo[i]}, {X[2*i]}, {X[2*i+1]}")

def transposed_store_stats_tile(p, acc, vaddr, soff, srd_out, tmp, ssum, ssq):
    pass

def gen_prep(p):
    name = "prep_kernel"
    header(p, name)
    NK = 640; NLN = 32; NW = 21
    p(f"s_cmp_ge_u32 s2, {NK+NLN+NW}")
    p("s_cbranch_scc1 prep_end")
    load_ptrs(p)
    p("v_lshrrev_b32 v2, 6, v0")
    p("v_and_b32 v1, 63, v0")
    p("v_and_b32 v3, 31, v0")
    p("v_readfirstlane_b32 s3, v2")
    p("v_bfe_u32 v4, v0, 5, 1")
    p("v_and_b32 v5, 15, v0")
    p("v_bfe_u32 v6, v0, 4, 2")
    p("s_waitcnt lgkmcnt(0)")
    PSZ = 640 * 128 * 2
    srd(p, 44, 18, 0, PSZ); srd(p, 48, 20, 0, PSZ); srd(p, 52, 22, 0, PSZ); srd(p, 56, 24, 0, PSZ)
    srd(p, 60, 40, WS_KREV, 640 * KREV_STRIDE)
    srd(p, 64, 16, 0, XSZ)
    srd(p, 68, 40, WS_XTA, XSZ)
    srd(p, 72, 40, WS_STATS, 2048 * 8)
    srd(p, 76, 32, 0, 640 * 640 * 2)
    srd(p, 80, 34, 0, 640 * 20 * 2)
    srd(p, 84, 36, 0, 640 * 20 * 2)
    srd(p, 88, 38, 0, 640 * 640 * 2)
    srd(p, 92, 40, WS_WT, 0x200000)
    srd(p, 96, 40, WS_WOT, 640 * 1280)
    p("s_cmp_ge_u32 s2, 672")
    p("s_cbranch_scc1 prep_w")
    p("s_cmp_ge_u32 s2, 640")
    p("s_cbranch_scc1 prep_ln")

    PART = 2048
    PSTR = 2052 * 4
    p("s_lshl_b32 s4, s2, 1")
    p("s_and_b32 s4, s4, 0xfffffffc")
    p("s_load_dword s5, s[26:27], s4")
    p("v_and_b32 v7, 127, v0")
    p("s_lshl_b32 s6, s2, 8")
    p("v_lshlrev_b32 v8, 1, v7")
    p("buffer_load_ushort v10, v8, s[44:47], s6 offen")
    p("buffer_load_ushort v11, v8, s[48:51], s6 offen")
    p("buffer_load_ushort v12, v8, s[52:55], s6 offen")
    p("buffer_load_ushort v13, v8, s[56:59], s6 offen")
    p("s_and_b32 s7, s2, 1")
    p("s_lshl_b32 s7, s7, 4")
    p("s_waitcnt lgkmcnt(0)")
    p("s_lshr_b32 s5, s5, s7")
    p("s_lshl_b32 s5, s5, 16")
    p(f"v_mov_b32 v14, s5")
    p(f"v_mul_f32 v14, {LOG2E}, v14")
    p("v_exp_f32 v14, v14")
    p("s_waitcnt vmcnt(0)")
    bf16r(p, "v14", "v14")
    p("v_lshlrev_b32 v10, 16, v10")
    p("v_lshlrev_b32 v11, 16, v11")
    p("v_lshlrev_b32 v12, 16, v12")
    p("v_lshlrev_b32 v13, 16, v13")
    p(f"v_mul_f32 v10, {LOG2E}, v10")
    p("v_exp_f32 v10, v10")
    p("v_mul_f32 v17, v11, v14")
    bf16r(p, "v10", "v10")
    p("v_mul_f32 v16, v10, v14")
    p(f"v_mul_f32 v16, 0xbfb8aa3b, v16")
    p(f"v_mul_f32 v17, {INV2PI}, v17")
    p("v_mul_f32 v18, v12, v14")
    p("v_mul_f32 v19, v13, v14")
    p("v_add_f32 v18, v18, v18")
    p("v_add_f32 v19, v19, v19")
    p("v_lshlrev_b32 v9, 4, v7")
    p("ds_write_b128 v9, v[16:19]")
    p("s_waitcnt lgkmcnt(0)")
    p("s_barrier")
    p("s_lshl_b32 s8, s3, 9")
    p("v_lshlrev_b32 v9, 4, v3")
    p("v_add_u32 v9, s8, v9")
    p("ds_read_b128 v[16:19], v9")
    p("v_cvt_f32_u32 v21, v3")
    p("v_mul_f32 v20, 0x42800000, v21")
    p("v_add_f32 v22, 0x42000000, v21")
    p("s_waitcnt lgkmcnt(0)")
    p("v_mul_f32 v24, 0x45000000, v16")
    p("v_mul_f32 v25, 0x45000000, v17")
    p("v_exp_f32 v24, v24")
    p("v_fract_f32 v25, v25")
    p("v_cos_f32 v26, v25")
    p("v_sin_f32 v27, v25")
    p("v_mul_f32 v26, v18, v26")
    p("v_fma_f32 v26, -v19, v27, v26")
    p("v_mul_f32 v26, v26, v24")
    p("v_cmp_gt_u32 vcc, 32, v1")
    p("s_nop 1")
    p("v_cndmask_b32 v26, 0, v26, vcc")
    p("s_nop 1")
    row16_sum(p, ["v26"])
    p("s_nop 0")
    p("v_readlane_b32 s9, v26, 0")
    p("v_readlane_b32 s10, v26, 16")
    p("s_mul_i32 s11, s3, " + str(PSTR))
    p(f"s_add_u32 s11, s11, {PART}")
    p("v_mov_b32 v26, s9")
    p("v_add_f32 v26, s10, v26")
    p(f"v_mov_b32 v27, s11")
    p("ds_write_b32 v27, v26 offset:8192")
    for i in range(32):
        p(f"v_mov_b32 v{96+i}, 0")
    p("v_lshlrev_b32 v9, 6, v4")
    p("v_add_u32 v9, s8, v9")
    XA = [f"v{32+i}" for i in range(8)]
    XB0 = [f"v{40+i}" for i in range(8)]
    XB1 = [f"v{48+i}" for i in range(8)]
    for ks in range(4):
        for j in range(4):
            p(f"ds_read_b128 v[{136+4*j}:{139+4*j}], v9 offset:{ks*128+j*16}")
        p("s_waitcnt lgkmcnt(0)")
        for (X, pv, isA) in ((XA, "v20", True), (XB0, "v21", False), (XB1, "v22", False)):
            for j in range(4):
                P = 136 + 4 * j; T = 152 + 4 * j
                p(f"v_mul_f32 v{T}, v{P}, {pv}")
                p(f"v_mul_f32 v{T+1}, v{P+1}, {pv}")
            for j in range(4):
                T = 152 + 4 * j
                p(f"v_exp_f32 v{T}, v{T}")
                p(f"v_fract_f32 v{T+1}, v{T+1}")
            for j in range(4):
                T = 152 + 4 * j
                p(f"v_cos_f32 v{T+2}, v{T+1}")
                p(f"v_sin_f32 v{T+3}, v{T+1}")
            p("s_nop 0")
            for j in range(4):
                P = 136 + 4 * j; T = 152 + 4 * j
                if isA:
                    p(f"v_mul_f32 {X[2*j]}, v{P+2}, v{T+2}")
                    p(f"v_mul_f32 {X[2*j+1]}, v{P+2}, v{T+3}")
                    p(f"v_fma_f32 {X[2*j]}, -v{P+3}, v{T+3}, {X[2*j]}")
                    p(f"v_fma_f32 {X[2*j+1]}, v{P+3}, v{T+2}, {X[2*j+1]}")
                    p(f"v_mul_f32 {X[2*j]}, {X[2*j]}, v{T}")
                    p(f"v_mul_f32 {X[2*j+1]}, {X[2*j+1]}, v{T}")
                else:
                    p(f"v_mul_f32 {X[2*j]}, v{T}, v{T+2}")
                    p(f"v_mul_f32 {X[2*j+1]}, -v{T}, v{T+3}")
        split_hilo(p, XA, [f"v{56+i}" for i in range(4)], [f"v{60+i}" for i in range(4)], ["v168", "v169"])
        split_hilo(p, XB0, [f"v{64+i}" for i in range(4)], [f"v{68+i}" for i in range(4)], ["v168", "v169"])
        split_hilo(p, XB1, [f"v{72+i}" for i in range(4)], [f"v{76+i}" for i in range(4)], ["v168", "v169"])
        p("s_nop 1")
        p("v_mfma_f32_32x32x16_bf16 v[96:111], v[56:59], v[64:67], v[96:111]")
        p("v_mfma_f32_32x32x16_bf16 v[112:127], v[56:59], v[72:75], v[112:127]")
        p("v_mfma_f32_32x32x16_bf16 v[96:111], v[56:59], v[68:71], v[96:111]")
        p("v_mfma_f32_32x32x16_bf16 v[112:127], v[56:59], v[76:79], v[112:127]")
        p("v_mfma_f32_32x32x16_bf16 v[96:111], v[60:63], v[64:67], v[96:111]")
        p("v_mfma_f32_32x32x16_bf16 v[112:127], v[60:63], v[72:75], v[112:127]")
    p("v_lshlrev_b32 v9, 10, v4")
    p("v_lshl_add_u32 v9, v3, 2, v9")
    p("v_add_u32 v9, s11, v9")
    p("s_nop 15")
    for tb in range(2):
        for q in range(16):
            a = 8 * (q >> 2) + (q & 3)
            p(f"ds_write_b32 v9, v{96+16*tb+q} offset:{(64*a+32*tb)*4}")
    p("s_waitcnt lgkmcnt(0)")
    p("s_barrier")
    p("v_lshlrev_b32 v10, 3, v0")
    p("v_sub_u32 v10, 2047, v10")
    for j in range(8):
        p(f"v_subrev_u32 v{16+j}, {j}, v10")
        p(f"v_cvt_f32_u32 v{16+j}, v{16+j}")
    for j in range(8):
        bf16r(p, f"v{16+j}", f"v{16+j}")
    for j in range(8):
        p(f"v_cvt_u32_f32 v{16+j}, v{16+j}")
        p(f"v_lshlrev_b32 v{16+j}, 2, v{16+j}")
    for j in range(8):
        for w in range(4):
            p(f"ds_read_b32 v{32+4*j+w}, v{16+j} offset:{PART+w*PSTR}")
    p("s_waitcnt lgkmcnt(0)")
    for j in range(8):
        b = 32 + 4 * j
        p(f"v_add_f32 v{b}, v{b}, v{b+1}")
        p(f"v_add_f32 v{b+2}, v{b+2}, v{b+3}")
        p(f"v_add_f32 v{b}, v{b}, v{b+2}")
    for i in range(4):
        p(f"v_cvt_pk_bf16_f32 v{64+i}, v{32+8*i}, v{36+8*i}")
    p(f"s_mul_i32 s12, s2, {KREV_STRIDE}")
    p("v_lshlrev_b32 v11, 4, v0")
    p("buffer_store_dwordx4 v[64:67], v11, s[60:63], s12 offen")
    p("v_mov_b32 v68, 0"); p("v_mov_b32 v69, 0"); p("v_mov_b32 v70, 0"); p("v_mov_b32 v71, 0")
    p("v_add_u32 v11, 4096, v11")
    p("v_cmp_gt_u32 vcc, 4, v0")
    p("s_and_saveexec_b64 s[14:15], vcc")
    p("s_cbranch_execz prep_kg_done")
    p("buffer_store_dwordx4 v[68:71], v11, s[60:63], s12 offen")
    p("prep_kg_done:")
    p("s_endpgm")

    p("prep_ln:")
    p("s_sub_u32 s4, s2, 640")
    p("s_lshl_b32 s4, s4, 6")
    p("s_lshl_b32 s5, s3, 4")
    p("s_add_u32 s4, s4, s5")
    p("v_add_u32 v8, s4, v5")
    p("s_movk_i32 s6, 1280")
    p("v_mul_lo_u32 v8, v8, s6")
    p("v_lshl_add_u32 v8, v6, 4, v8")
    for s in range(20):
        p(f"buffer_load_dwordx4 v[{64+4*s}:{67+4*s}], v8, s[64:67], 0 offen offset:{64*s}")
    p("v_lshlrev_b32 v9, 3, v6")
    p("v_sub_u32 v9, v5, v9")
    p("v_mov_b32 v12, 0x3f80"); p("v_mov_b32 v13, 0x3f800000")
    for u in range(2):
        for i in range(4):
            p(f"v_cmp_eq_u32 vcc, {2*i-16*u}, v9")
            p(f"v_cmp_eq_u32 s[14:15], {2*i+1-16*u}, v9")
            p("s_nop 1")
            p(f"v_cndmask_b32 v{16+4*u+i}, 0, v12, vcc")
            p(f"v_cndmask_b32 v{16+4*u+i}, v{16+4*u+i}, v13, s[14:15]")
    for i in range(8):
        p(f"v_mov_b32 v{24+i}, 0")
    p("v_lshlrev_b32 v10, 12, v5")
    p("v_lshl_add_u32 v10, v6, 3, v10")
    p("s_lshl_b32 s7, s4, 1")
    p("v_add_u32 v10, s7, v10")
    p("s_mov_b32 s8, 0")
    for s in range(20):
        p(f"s_waitcnt vmcnt({min(63, (19-s) + 2*s)})")
        for u in range(2):
            c = 32 + 4 * u
            p(f"v_mfma_f32_16x16x32_bf16 v[{c}:{c+3}], v[{64+4*s}:{67+4*s}], v[{16+4*u}:{19+4*u}], 0")
        p("s_nop 7")
        for u in range(2):
            c = 32 + 4 * u
            for j in range(4):
                p(f"v_add_f32 v{24+j}, v{24+j}, v{c+j}")
                p(f"v_fma_f32 v{28+j}, v{c+j}, v{c+j}, v{28+j}")
            p(f"v_cvt_pk_bf16_f32 v{40+2*u}, v{c}, v{c+1}")
            p(f"v_cvt_pk_bf16_f32 v{41+2*u}, v{c+2}, v{c+3}")
            p(f"buffer_store_dwordx2 v[{40+2*u}:{41+2*u}], v10, s[68:71], s8 offen")
            p("s_add_u32 s8, s8, 65536")
    row16_sum(p, [f"v{24+i}" for i in range(8)])
    p("v_lshlrev_b32 v11, 2, v6")
    p("v_add_u32 v11, s4, v11")
    p("v_lshlrev_b32 v11, 3, v11")
    for j in range(4):
        p(f"v_mov_b32 v{44+2*j}, v{24+j}")
        p(f"v_mov_b32 v{45+2*j}, v{28+j}")
    p("v_cmp_eq_u32 vcc, 0, v5")
    p("s_and_saveexec_b64 s[14:15], vcc")
    p("s_cbranch_execz prep_ln_done")
    p("buffer_store_dwordx4 v[44:47], v11, s[72:75], 0 offen")
    p("buffer_store_dwordx4 v[48:51], v11, s[72:75], 0 offen offset:16")
    p("prep_ln_done:")
    p("s_endpgm")

    p("prep_w:")
    p("s_sub_u32 s4, s2, 672")
    tile_swz_voffs(p, "v8", "v9", "v1", "v10", "v11", 1280)
    tr_addr(p, "v12", "v1", "s3", "v10", "v11")
    p("v_add_u32 v13, 40960, v12")
    p("v_lshlrev_b32 v7, 4, v1")
    p("s_cmp_eq_u32 s4, 20")
    p("s_cbranch_scc1 prep_w_kv")
    p("s_mul_i32 s9, s3, 20480")
    p("s_mul_i32 s8, s3, 204800")
    p("s_cmp_ge_u32 s4, 10")
    p("s_cbranch_scc1 prep_w_o")
    def wdma(srdn, scol):
        p(f"s_lshl_b32 s10, {scol}, 7")
        p("s_add_u32 s8, s8, s10")
        for k in range(20):
            p(f"s_add_u32 s10, s9, {1024*k}")
            p(f"s_add_u32 s11, s8, {10240*k}")
            p("s_mov_b32 m0, s10")
            p("s_nop 0")
            p(f"buffer_load_dwordx4 {'v8' if k%2==0 else 'v9'}, s[{srdn}:{srdn+3}], s11 offen lds")
    wdma(76, "s4")
    p("s_lshl_b32 s5, s4, 2")
    p("s_add_u32 s5, s5, s3")
    p("s_cmp_ge_u32 s5, 37")
    p("s_cselect_b32 s6, 2, 0")
    p("s_add_u32 s5, s5, s6")
    p("s_mul_i32 s6, s5, 20480")
    p("s_branch prep_w_common")
    p("prep_w_o:")
    p("s_sub_u32 s4, s4, 10")
    wdma(88, "s4")
    p("s_lshl_b32 s5, s4, 2")
    p("s_add_u32 s5, s5, s3")
    p("s_mul_i32 s6, s5, 20480")
    p(f"s_add_u32 s6, s6, {WS_WOT}")
    p("s_movk_i32 s5, 60")
    p("s_branch prep_w_common")
    p("prep_w_kv:")
    for i in range(8): p(f"v_mov_b32 v{40+i}, 0")
    p("v_mov_b32 v14, 0")
    p(f"v_mov_b32 v15, {WS_KMAX}")
    p("buffer_store_dword v14, v15, s[92:95], 0 offen")
    for it in range(3):
        p(f"v_add_u32 v14, {256*it}, v0")
        p("v_mul_u32_u24 v15, 40, v14")
        for (sr, base) in ((80, 16), (84, 28)):
            p(f"buffer_load_dwordx4 v[{base}:{base+3}], v15, s[{sr}:{sr+3}], 0 offen")
            p(f"buffer_load_dwordx4 v[{base+4}:{base+7}], v15, s[{sr}:{sr+3}], 0 offen offset:16")
            p(f"buffer_load_dwordx2 v[{base+8}:{base+9}], v15, s[{sr}:{sr+3}], 0 offen offset:32")
        p("v_mov_b32 v26, 0"); p("v_mov_b32 v27, 0"); p("v_mov_b32 v38, 0"); p("v_mov_b32 v39, 0")
        p("v_bfe_u32 v48, v14, 1, 1")
        p("v_bfe_u32 v49, v14, 3, 1")
        p("v_lshl_or_b32 v48, v49, 1, v48")
        p("v_lshlrev_b32 v49, 7, v14")
        for u in range(4):
            p(f"v_xor_b32 v{50+u}, {u}, v48")
            p(f"v_lshl_add_u32 v{50+u}, v{50+u}, 5, v49")
        p("v_cmp_gt_u32 vcc, 640, v14")
        p("s_and_saveexec_b64 s[14:15], vcc")
        p("s_waitcnt vmcnt(0)")
        p("ds_write_b128 v50, v[16:19]"); p("ds_write_b128 v50, v[20:23] offset:16")
        p("ds_write_b128 v51, v[24:27]"); p("ds_write_b128 v51, v[40:43] offset:16")
        p("ds_write_b128 v52, v[28:31]"); p("ds_write_b128 v52, v[32:35] offset:16")
        p("ds_write_b128 v53, v[36:39]"); p("ds_write_b128 v53, v[40:43] offset:16")
        p("s_mov_b64 exec, s[14:15]")
    p("s_lshr_b32 s5, s3, 1")
    p("s_mul_i32 s5, s5, 5")
    p("s_and_b32 s6, s3, 1")
    p("s_add_u32 s5, s5, s6")
    p("s_add_u32 s5, s5, 37")
    p("s_mul_i32 s6, s5, 20480")
    p("prep_w_common:")
    p("s_waitcnt vmcnt(0) lgkmcnt(0)")
    p("s_barrier")
    for ks in range(20):
        va = "v12" if ks < 10 else "v13"
        o = 4096 * (ks % 10)
        p(f"ds_read_b64_tr_b16 v[{64+4*ks}:{64+4*ks+1}], {va} offset:{o}")
        p(f"ds_read_b64_tr_b16 v[{64+4*ks+2}:{64+4*ks+3}], {va} offset:{o+512}")
    for i in range(4): p(f"v_mov_b32 v{16+i}, 0x3f803f80")
    p("s_add_u32 s7, s6, 4096"); p("s_add_u32 s8, s6, 8192"); p("s_add_u32 s9, s6, 12288"); p("s_add_u32 s10, s6, 16384")
    p("s_waitcnt lgkmcnt(0)")
    for ks in range(20):
        p(f"buffer_store_dwordx4 v[{64+4*ks}:{64+4*ks+3}], v7, s[92:95], s{6+ks//4} offen offset:{1024*(ks%4)}")
        p(f"v_mfma_f32_16x16x32_bf16 v[20:23], v[{64+4*ks}:{64+4*ks+3}], v[16:19], {'0' if ks==0 else 'v[20:23]'}")
    p("v_lshlrev_b32 v10, 4, v6")
    p("s_lshl_b32 s5, s5, 6")
    p(f"s_add_u32 s5, s5, {WS_CS}")
    p("v_cmp_eq_u32 vcc, 0, v5")
    p("s_and_saveexec_b64 s[14:15], vcc")
    p("s_cbranch_execz prep_end")
    p("s_nop 4")
    p("buffer_store_dwordx4 v[20:23], v10, s[92:95], s5 offen")
    p("prep_end:")
    p("s_endpgm")
    return name, 176, (NK + NLN + NW, 256, 81920)
```

```python
from common import *
import struct, math

def f2u(x): return struct.unpack('<I', struct.pack('<f', x))[0]

def gen_qkv(p):
    name = "qkv_kernel"
    header(p, name)
    NWG = 256
    CSC = f2u((20 ** -0.5) * math.log2(math.e))
    XT = 81920
    p(f"s_cmp_ge_u32 s2, {NWG}")
    p("s_cbranch_scc1 qkv_end")
    load_ptrs(p)
    p("v_lshrrev_b32 v2, 6, v0")
    p("v_and_b32 v1, 63, v0")
    p("v_and_b32 v5, 15, v0")
    p("v_readfirstlane_b32 s3, v2")
    p("v_bfe_u32 v6, v0, 4, 2")
    tile_swz_voffs(p, "v8", "v9", "v1", "v10", "v11", 128)
    p("v_lshlrev_b32 v7, 4, v1")
    p("s_lshr_b32 s4, s2, 3")
    p("s_and_b32 s5, s2, 7")
    p("s_mul_i32 s6, s5, 6")
    p("s_mul_i32 s7, s5, 5")
    p("s_add_u32 s7, s7, 4")
    p("s_cmp_lt_u32 s5, 4")
    p("s_cselect_b32 s6, s6, s7")
    p("s_waitcnt lgkmcnt(0)")
    srd(p, 44, 40, WS_XTB, XSZ)
    srd(p, 48, 40, WS_WT, 44 * 20480)
    srd(p, 52, 40, WS_Q, XSZ)
    srd(p, 56, 40, WS_KV, KV_SIZE)
    srd(p, 60, 40, WS_XR, XSZ)
    srd(p, 64, 40, WS_CS, 0x8000 + 64)
    srd(p, 72, 40, WS_STATS, 2048 * 8)
    vm = VM(p)
    p(f"s_mul_i32 s8, s4, {XT}")
    p("s_mul_i32 s9, s3, 20480")
    p("s_add_u32 s8, s8, s9")
    for k in range(20):
        p(f"s_add_u32 s10, s9, {1024*k}")
        p(f"s_add_u32 s11, s8, {1024*k}")
        p("s_mov_b32 m0, s10")
        p("s_nop 0")
        p(f"buffer_load_dwordx4 {'v8' if k%2==0 else 'v9'}, s[44:47], s11 offen lds")
        vm.issue("x")
    p("s_mul_i32 s12, s6, 20480")
    p("s_add_u32 s13, s12, s9")
    for k in range(20):
        p(f"s_add_u32 s10, s9, {XT+1024*k}")
        p(f"s_add_u32 s11, s13, {1024*k}")
        p("s_mov_b32 m0, s10")
        p("s_nop 0")
        p(f"buffer_load_dwordx4 v7, s[48:51], s11 offen lds")
        vm.issue("w0")
    CSR = 184
    p("v_lshlrev_b32 v10, 4, v6")
    p("s_lshl_b32 s14, s6, 6")
    for j in range(6):
        p(f"buffer_load_dwordx4 v[{CSR+4*j}:{CSR+4*j+3}], v10, s[64:67], s14 offen offset:{64*j}")
        vm.issue("cs")
    tr_addr(p, "v12", "v1", "s3", "v10", "v11")
    p("v_add_u32 v13, 40960, v12")
    p("s_lshl_b32 s15, s4, 6")
    p("s_lshl_b32 s10, s3, 4")
    p("s_add_u32 s15, s15, s10")
    X = 64
    vm.wait("x")
    p("s_barrier")
    for ks in range(20):
        va = "v12" if ks < 10 else "v13"
        o = 4096 * (ks % 10)
        p(f"ds_read_b64_tr_b16 v[{X+4*ks}:{X+4*ks+1}], {va} offset:{o}")
        p(f"ds_read_b64_tr_b16 v[{X+4*ks+2}:{X+4*ks+3}], {va} offset:{o+512}")
    p("v_mov_b32 v16, 0x3f803f80"); p("v_mov_b32 v17, 0x3f803f80")
    p("v_mov_b32 v18, 0x3f803f80"); p("v_mov_b32 v19, 0x3f803f80")
    p("s_waitcnt lgkmcnt(0)")
    p("s_barrier")
    p("s_mul_i32 s10, s3, 10240")
    p("s_add_u32 s13, s12, s10")
    p(f"s_add_u32 s13, s13, {4*20480}")
    for k in range(10):
        p(f"s_add_u32 s11, s10, {1024*k}")
        p("s_mov_b32 m0, s11")
        p(f"s_add_u32 s11, s13, {1024*k}")
        p(f"buffer_load_dwordx4 v7, s[48:51], s11 offen lds")
        vm.issue("w1")
    SQ = 208; SM = 212
    for ks in range(20):
        xf = f"v[{X+4*ks}:{X+4*ks+3}]"
        p(f"v_mfma_f32_16x16x32_bf16 v[{SQ}:{SQ+3}], {xf}, {xf}, {'0' if ks==0 else f'v[{SQ}:{SQ+3}]'}")
        p(f"v_mfma_f32_16x16x32_bf16 v[{SM}:{SM+3}], v[16:19], {xf}, {'0' if ks==0 else f'v[{SM}:{SM+3}]'}")
    p("v_add_u32 v14, s15, v5")
    p("s_movk_i32 s10, 1280")
    p("v_mul_lo_u32 v15, v14, s10")
    p("s_cmp_lg_u32 s5, 5")
    p("s_cbranch_scc1 qkv_nozs")
    p("v_lshlrev_b32 v10, 3, v14")
    p("v_mov_b32 v20, 0"); p("v_mov_b32 v21, 0")
    p("buffer_store_dwordx2 v[20:21], v10, s[72:75], 0 offen")
    p("qkv_nozs:")
    p("s_cmp_lg_u32 s5, 4")
    p("s_cbranch_scc1 qkv_noxr")
    p("v_lshl_add_u32 v10, v6, 4, v15")
    for ks in range(20):
        p(f"buffer_store_dwordx4 v[{X+4*ks}:{X+4*ks+3}], v10, s[60:63], 0 offen offset:{64*ks}")
    p("qkv_noxr:")
    p("v_and_b32 v10, 3, v5")
    p("v_cmp_eq_u32 vcc, 1, v10")
    p("v_cmp_eq_u32 s[68:69], 2, v10")
    p("v_cmp_eq_u32 s[70:71], 3, v10")
    p("v_lshrrev_b32 v11, 2, v5")
    p("v_lshl_add_u32 v11, v11, 4, v5")
    p("v_lshlrev_b32 v11, 2, v11")
    p(f"v_cndmask_b32 v20, v{SQ}, v{SQ+1}, vcc")
    p(f"v_cndmask_b32 v20, v20, v{SQ+2}, s[68:69]")
    p(f"v_cndmask_b32 v20, v20, v{SQ+3}, s[70:71]")
    p("ds_bpermute_b32 v22, v11, v20")
    p("s_waitcnt lgkmcnt(0)")
    ln_row_params(p, f"v{SM}", "v22", "v24", "v25", "v26", "v27")
    p(f"v_mul_f32 v26, {CSC}, v25")
    p("v_lshl_add_u32 v28, v6, 3, v15")
    p("s_lshl_b32 s16, s6, 5")
    p("s_cmp_eq_u32 s5, 7")
    p("s_cselect_b32 s17, 64, 0")
    p("s_sub_u32 s16, s16, s17")
    WB = 144; NB = 8
    ACC = [176, 180]
    def gemm_tile(j, swapped):
        base = XT + 20480 * j if j < 4 else 20480 * (j - 4)
        acc = ACC[j & 1]
        va, off0 = {0: ("v29", 0), 1: ("v29", 20480), 2: ("v29", 40960), 3: ("v50", 20480), 4: ("v7", 0), 5: ("v7", 20480)}[j]
        PF = 6
        for s in range(PF):
            p(f"ds_read_b128 v[{WB+4*(s%NB)}:{WB+4*(s%NB)+3}], {va} offset:{off0+1024*s}")
        for s in range(20):
            if s + PF < 20:
                q = s + PF
                p(f"ds_read_b128 v[{WB+4*(q%NB)}:{WB+4*(q%NB)+3}], {va} offset:{off0+1024*q}")
            p(f"s_waitcnt lgkmcnt({min(PF, 19-s)})")
            W = f"v[{WB+4*(s%NB)}:{WB+4*(s%NB)+3}]"; Hh = f"v[{X+4*s}:{X+4*s+3}]"
            A, B = (W, Hh) if swapped else (Hh, W)
            p(f"v_mfma_f32_16x16x32_bf16 v[{acc}:{acc+3}], {A}, {B}, {'0' if s==0 else f'v[{acc}:{acc+3}]'}")
        return acc
    def epi_swapped(j, acc, rs):
        p("s_nop 7")
        for i in range(4):
            p(f"v_fma_f32 v{32+i}, -v24, v{CSR+4*j+i}, v{acc+i}")
        for i in range(4):
            p(f"v_mul_f32 v{32+i}, {rs}, v{32+i}")
        p("v_cvt_pk_bf16_f32 v30, v32, v33")
        p("v_cvt_pk_bf16_f32 v31, v34, v35")
    def qtile(j):
        acc = gemm_tile(j, True)
        epi_swapped(j, acc, "v26")
        p(f"buffer_store_dwordx2 v[30:31], v28, s[52:55], s16 offen offset:{32*j}")
    p("v_add_u32 v29, 81920, v7")
    p("v_add_u32 v50, 122880, v7")
    vm.wait("cs")
    p("s_barrier")
    for j in range(3): qtile(j)
    p("s_cmp_eq_u32 s5, 6")
    p("s_cbranch_scc1 qkv_k")
    p("s_cmp_eq_u32 s5, 7")
    p("s_cbranch_scc1 qkv_v")
    qtile(3)
    p("s_waitcnt vmcnt(0)")
    p("s_barrier")
    qtile(4)
    p("s_cmp_ge_u32 s5, 4")
    p("s_cbranch_scc1 qkv_end")
    qtile(5)
    p("s_endpgm")
    p("qkv_k:")
    acc = gemm_tile(3, True)
    epi_swapped(3, acc, "v25")
    p("v_lshlrev_b32 v10, 5, v14")
    p("v_lshl_add_u32 v10, v6, 3, v10")
    p("buffer_store_dwordx2 v[30:31], v10, s[56:59], 0 offen")
    def sq4(dst, first):
        p("v_lshlrev_b32 v32, 16, v30"); p("v_and_b32 v33, 0xffff0000, v30")
        p("v_lshlrev_b32 v34, 16, v31"); p("v_and_b32 v35, 0xffff0000, v31")
        if first: p(f"v_mul_f32 {dst}, v32, v32")
        else: p(f"v_fma_f32 {dst}, v32, v32, {dst}")
        for r in (33, 34, 35): p(f"v_fma_f32 {dst}, v{r}, v{r}, {dst}")
    sq4("v36", True)
    p("s_waitcnt vmcnt(0)")
    p("s_barrier")
    acc = gemm_tile(4, True)
    epi_swapped(4, acc, "v25")
    sq4("v36", False)
    p("v_lshlrev_b32 v10, 3, v14")
    p(f"v_add_u32 v10, {KV_KHI}, v10")
    p("v_mov_b32 v37, v36")
    p("s_nop 1")
    p("v_permlane16_swap_b32 v36, v37")
    p("v_add_f32 v36, v36, v37")
    p("v_mov_b32 v37, v36")
    p("s_nop 1")
    p("v_permlane32_swap_b32 v36, v37")
    p("v_add_f32 v36, v36, v37")
    for sh in (1, 2, 4, 8):
        p("s_nop 1")
        p(f"v_max_f32_dpp v36, v36, v36 row_ror:{sh} row_mask:0xf bank_mask:0xf")
    p(f"v_mov_b32 v38, {WS_KMAX - WS_CS}")
    p("v_cmp_eq_u32 vcc, 0, v6")
    p("s_and_saveexec_b64 s[70:71], vcc")
    p("s_cbranch_execz qkv_end")
    p("buffer_store_dwordx2 v[30:31], v10, s[56:59], 0 offen")
    p("v_cmp_eq_u32 vcc, 0, v1")
    p("s_and_saveexec_b64 s[70:71], vcc")
    p("s_cbranch_execz qkv_end")
    p("buffer_atomic_umax v36, v38, s[64:67], 0 offen")
    p("s_endpgm")
    p("qkv_v:")
    for j in range(4):
        p(f"v_lshlrev_b32 v10, 4, v6")
        p(f"v_add_u32 v10, {4*j}, v10")
        p(f"ds_bpermute_b32 v{40+j}, v10, v24")
        p(f"ds_bpermute_b32 v{44+j}, v10, v25")
    p("v_lshlrev_b32 v10, 2, v5")
    p("buffer_load_dword v48, v10, s[64:67], s14 offen offset:192")
    p("buffer_load_dword v49, v10, s[64:67], s14 offen offset:256")
    p("v_lshlrev_b32 v13, 1, v6")
    p("v_lshrrev_b32 v11, 1, v6")
    p("v_or_b32 v13, v13, v11")
    p("v_and_b32 v13, 3, v13")
    p("v_lshlrev_b32 v13, 2, v13")
    p("v_add_u32 v13, s15, v13")
    p("v_lshrrev_b32 v11, 3, v13")
    p("v_xor_b32 v11, v11, v5")
    p("v_lshlrev_b32 v11, 4, v11")
    p("v_and_b32 v13, 4, v13")
    p("v_lshl_add_u32 v11, v13, 1, v11")
    p("v_lshl_add_u32 v11, v5, 12, v11")
    p(f"v_add_u32 v11, {KV_VT}, v11")
    def epi_v(acc, cs):
        p("s_nop 7")
        for i in range(4):
            p(f"v_fma_f32 v{32+i}, -v{40+i}, {cs}, v{acc+i}")
        for i in range(4):
            p(f"v_mul_f32 v{32+i}, v{44+i}, v{32+i}")
        p("v_cvt_pk_bf16_f32 v30, v32, v33")
        p("v_cvt_pk_bf16_f32 v31, v34, v35")
    acc = gemm_tile(3, False)
    p("s_waitcnt vmcnt(0)")
    epi_v(acc, "v48")
    p("buffer_store_dwordx2 v[30:31], v11, s[56:59], 0 offen")
    p("s_barrier")
    acc = gemm_tile(4, False)
    epi_v(acc, "v49")
    p("v_add_u32 v11, 65536, v11")
    p("v_cmp_gt_u32 vcc, 4, v5")
    p("s_and_saveexec_b64 s[70:71], vcc")
    p("s_cbranch_execz qkv_end")
    p("buffer_store_dwordx2 v[30:31], v11, s[56:59], 0 offen")
    p("qkv_end:")
    p("s_endpgm")
    return name, 216, (NWG, 256, 163840)
```

```python
from fw import Prog
L = 2048; D = 640; H = 32; DH = 20
WS_WT = 0x000000
WS_CS = 0x0F0000
WS_KMAX = 0x0F8000
WS_WOT = 0x100000
WS_KREV = 0x200000
KREV_STRIDE = 8320
WS_XTA = 0x1600000
WS_XTB = 0x800000
WS_STATS = 0xB00000
WS_Q = 0xC00000
WS_KV = 0xF00000
KV_KHI = 65536
KV_VT = 65536 + 16384
KV_SIZE = 163840
WS_O = 0x1000000
WS_XR = 0x1300000
XSZ = L * D * 2
LOG2E = 0x3fb8aa3b
INV2PI = 0x3e22f983

def srd(p, s, base, off, size):
    p(f"s_add_u32 s{s}, s{base}, {off}")
    p(f"s_addc_u32 s{s+1}, s{base+1}, 0")
    p(f"s_mov_b32 s{s+2}, {size}")
    p(f"s_mov_b32 s{s+3}, 0x00020000")

def header(p, name):
    p.raw(f".globl {name}\n.p2align 8\n.type {name},@function\n{name}:")

def kd(name, vgpr, sgpr=102):
    acc = (vgpr + 3) // 4 * 4
    return f""".section .rodata,"a"
.p2align 6
.amdhsa_kernel {name}
  .amdhsa_next_free_vgpr {vgpr}
  .amdhsa_next_free_sgpr {sgpr}
  .amdhsa_accum_offset {acc}
  .amdhsa_group_segment_fixed_size 0
  .amdhsa_kernarg_size 120
  .amdhsa_user_sgpr_count 2
  .amdhsa_user_sgpr_kernarg_segment_ptr 1
  .amdhsa_system_sgpr_workgroup_id_x 1
.end_amdhsa_kernel
.text
"""

def load_ptrs(p):
    p("s_load_dwordx16 s[16:31], s[0:1], 0")
    p("s_load_dwordx8 s[32:39], s[0:1], 64")
    p("s_load_dwordx2 s[40:41], s[0:1], 112")
    p("s_load_dwordx2 s[42:43], s[0:1], 96")

def bf16r(p, dst, src):
    p(f"v_cvt_pk_bf16_f32 {dst}, {src}, {src}")
    p(f"v_lshlrev_b32 {dst}, 16, {dst}")

def row16_sum(p, regs):
    for sh in (1, 2, 4, 8):
        for r in regs:
            p(f"v_add_f32_dpp {r}, {r}, {r} row_ror:{sh} row_mask:0xf bank_mask:0xf")
        if len(regs) < 3:
            p("s_nop 1")

def ln_row_params(p, vsum, vsq, vm, vrs, t0, t1):
    p(f"v_mul_f32 {vm}, 0x3acccccd, {vsum}")
    p(f"v_mul_f32 {t0}, 0x3acccccd, {vsq}")
    p(f"v_fma_f32 {t0}, -{vm}, {vm}, {t0}")
    p(f"v_max_f32 {t0}, 0, {t0}")
    bf16r(p, t0, t0)
    p(f"v_add_f32 {t0}, 0x3727c5ac, {t0}")
    bf16r(p, t0, t0)
    p(f"v_sqrt_f32 {t0}, {t0}")
    bf16r(p, vm, vm)
    bf16r(p, t0, t0)
    p(f"v_rcp_f32 {vrs}, {t0}")
    p("s_nop 0")


def tile_swz_voffs(p, vE, vO, vlane, t0, t1, RS):
    p(f"v_lshrrev_b32 {t0}, 3, {vlane}")
    p(f"v_mul_u32_u24 {vE}, {RS}, {t0}")
    p(f"v_bfe_u32 {t0}, {vlane}, 1, 2")
    p(f"v_bfe_u32 {t1}, {vlane}, 4, 1")
    p(f"v_xor_b32 {t0}, {t0}, {t1}")
    p(f"v_and_b32 {t1}, 1, {vlane}")
    p(f"v_lshl_or_b32 {t0}, {t0}, 1, {t1}")
    p(f"v_lshl_add_u32 {vO}, {t0}, 4, {vE}")
    p(f"v_xor_b32 {vO}, 64, {vO}") if RS % 128 == 0 else None
    p(f"v_lshl_add_u32 {vE}, {t0}, 4, {vE}")

def tr_addr(p, va, vlane, sunit, t0, t1):
    p(f"v_bfe_u32 {t0}, {vlane}, 2, 2")
    p(f"v_bfe_u32 {t1}, {vlane}, 4, 2")
    p(f"v_lshl_add_u32 {va}, {t1}, 3, {t0}")
    p(f"v_lshlrev_b32 {va}, 7, {va}")
    p(f"v_lshrrev_b32 {t0}, 1, {t0}")
    p(f"v_and_b32 {t1}, 1, {t1}")
    p(f"v_lshl_or_b32 {t0}, {t1}, 1, {t0}")
    p(f"v_xor_b32 {t0}, {sunit}, {t0}")
    p(f"v_lshl_add_u32 {va}, {t0}, 5, {va}")
    p(f"v_and_b32 {t1}, 3, {vlane}")
    p(f"v_lshl_add_u32 {va}, {t1}, 3, {va}")

class VM:
    def __init__(self, p): self.p = p; self.q = []
    def issue(self, tag): self.q.append(tag)
    def wait(self, tag):
        idx = max(i for i, t in enumerate(self.q) if t == tag)
        n = len(self.q) - 1 - idx
        assert n <= 63
        self.p(f"s_waitcnt vmcnt({n})")
        self.q = self.q[idx + 1:]
    def wait_all(self):
        self.p("s_waitcnt vmcnt(0)"); self.q = []


class Stamps:
    def __init__(self, p, on): self.p = p; self.on = on; self.n = 0
    def init(self):
        if not self.on: return
        self.p("s_memtime s[84:85]")
        self.p("s_load_dwordx2 s[96:97], s[0:1], 104")
    def mark(self):
        if not self.on: return
        assert self.n < 5
        self.p(f"s_memtime s[{86+2*self.n}:{87+2*self.n}]"); self.n += 1
    def dump(self, sidx, va, vb, ncols):
        if not self.on: return
        p = self.p
        p("s_waitcnt lgkmcnt(0)")
        p("s_mov_b32 s98, 65536"); p("s_mov_b32 s99, 0x00020000")
        p(f"s_mul_i32 s100, {sidx}, {4*ncols}")
        p(f"v_mov_b32 {vb}, s100")
        for i in range(self.n):
            p(f"s_sub_u32 s101, s{86+2*i}, s84")
            p(f"v_mov_b32 {va}, s101")
            p(f"buffer_store_dword {va}, {vb}, s[96:99], 0 offen offset:{4*i}")
```

```python
from common import *
import struct, math

def f2u(x): return struct.unpack('<I', struct.pack('<f', x))[0]

def gen_attn(p, force_fb=False, ofrag=True, stamp=False, stamp2=False):
    name = "attn_kernel"
    header(p, name)
    NWG = 256
    p(f"s_cmp_ge_u32 s2, {NWG}")
    p("s_cbranch_scc1 attn_end")
    load_ptrs(p)
    st = Stamps(p, stamp2); st.init()
    if stamp:
        p("s_memtime s[80:81]")
        p("s_memrealtime s[92:93]")
        p("s_load_dwordx2 s[88:89], s[0:1], 104")
    p("v_lshrrev_b32 v2, 6, v0")
    p("v_and_b32 v1, 63, v0")
    p("v_and_b32 v3, 31, v0")
    p("v_readfirstlane_b32 s3, v2")
    p("v_bfe_u32 v4, v0, 5, 1")
    p("v_lshlrev_b32 v5, 4, v1")
    p("s_lshl_b32 s4, s2, 3")
    p("s_add_u32 s4, s4, s3")
    p("s_and_b32 s5, s4, 31")
    p("s_lshr_b32 s6, s4, 5")
    p("s_waitcnt lgkmcnt(0)")
    st.mark()
    srd(p, 44, 40, WS_Q, XSZ)
    srd(p, 48, 40, WS_KV, KV_SIZE)
    srd(p, 52, 40, WS_O, XSZ)
    srd(p, 56, 40, WS_KMAX, 64)
    p("s_lshl_b32 s8, s6, 5")
    p("v_add_u32 v6, s8, v3")
    p("s_movk_i32 s9, 1280")
    p("v_mul_lo_u32 v7, v6, s9")
    p("s_mul_i32 s10, s5, 40")
    p("v_add_u32 v7, s10, v7")
    p("v_lshl_add_u32 v57, v4, 4, v7")
    p("buffer_load_dwordx4 v[8:11], v57, s[44:47], 0 offen")
    p("v_mov_b32 v58, 0x7fffffff")
    p("v_cmp_eq_u32 vcc, 0, v4")
    p("v_mov_b32 v59, 0")
    p("s_nop 0")
    p("v_cndmask_b32 v57, v58, v7, vcc")
    p("buffer_load_dwordx2 v[12:13], v57, s[44:47], 0 offen offset:32")
    p("buffer_load_dword v60, v59, s[56:59], 0 offen")
    p("s_lshl_b32 s12, s3, 10")
    for j in range(10):
        p(f"s_add_u32 s15, s12, {8192*j}")
        p("s_mov_b32 m0, s15")
        p("s_nop 0")
        p("buffer_load_dwordx4 v5, s[48:51], s15 offen lds")
    p(f"s_add_u32 s21, s12, {8192*10}")
    st.mark()
    p("v_mov_b32 v15, 0")
    for r in (26, 30): p(f"v_mov_b32 v{r}, 0x3f80")
    for r in (27, 31): p(f"v_mov_b32 v{r}, 0")
    p("v_mov_b32 v58, 0x3f803f80")
    p("v_cmp_eq_u32 vcc, 20, v3")
    p("s_nop 1")
    for r in range(32, 48):
        p(f"v_cndmask_b32 v{r}, 0, v58, vcc")
    p("s_mov_b32 s16, 0x000fffff")
    p("s_mov_b32 s17, 0x000fffff")
    def addr_init():
        p("v_lshlrev_b32 v138, 5, v3")
        p("v_lshl_add_u32 v138, v4, 4, v138")
        p("v_lshlrev_b32 v139, 3, v3")
        p("v_add_u32 v139, 16384, v139")
        p("v_and_b32 v61, 15, v3")
        for tt in range(4):
            for mf in range(2):
                r = 130 + 2 * tt + mf
                p(f"v_add_u32 v{r}, {4*tt+2*mf}, v4")
                p(f"v_xor_b32 v{r}, v{r}, v61")
                p(f"v_lshlrev_b32 v{r}, 4, v{r}")
                p(f"v_lshl_add_u32 v{r}, v3, 10, v{r}")
                p(f"v_add_u32 v{r}, 20480, v{r}")
        p("v_mov_b32 v128, v138")
        p("v_mov_b32 v129, v139")
        p("v_add_u32 v140, 4096, v138")
        p("v_add_u32 v141, 1024, v139")
        for r in range(96, 112): p(f"v_mov_b32 v{r}, 0")
    addr_init()
    for r in range(48, 56): p(f"v_mov_b32 v{r}, 0")
    p("s_waitcnt vmcnt(10)")
    st.mark()
    first = True
    for r in (8, 9, 10, 11, 12, 13):
        p(f"v_lshlrev_b32 v56, 16, v{r}")
        p(f"v_and_b32 v57, 0xffff0000, v{r}")
        if first: p("v_mul_f32 v62, v56, v56"); first = False
        else: p("v_fma_f32 v62, v56, v56, v62")
        p("v_fma_f32 v62, v57, v57, v62")
    p("v_mov_b32 v63, v62")
    p("s_nop 1")
    p("v_permlane32_swap_b32 v62, v63")
    p("v_add_f32 v62, v62, v63")
    p("v_mul_f32 v62, v62, v60")
    p("v_sqrt_f32 v62, v62")
    p("v_cmp_eq_u32 vcc, 0, v4")
    p("v_mul_f32 v62, 0x3f810000, v62")
    p("v_add_u32 v62, 0xffff, v62")
    p("v_lshrrev_b32 v62, 16, v62")
    p("v_or_b32 v62, 0x8000, v62")
    p("v_cndmask_b32 v14, 0, v62, vcc")
    p("s_waitcnt vmcnt(0)")
    st.mark()
    p("s_barrier")
    st.mark()
    st.dump("s4", "v56", "v57", 5)
    if stamp: p("s_memtime s[82:83]")

    KL = [16, 20]; KH = [24, 28]; VA = [32, 40]; S = [64, 80]
    def readK(tt, buf):
        a0, a1 = ("v128", "v129") if tt < 4 else ("v140", "v141")
        p(f"ds_read_b128 v[{KL[buf]}:{KL[buf]+3}], {a0} offset:{1024*(tt&3)}")
        p(f"ds_read_b64 v[{KH[buf]}:{KH[buf]+1}], {a1} offset:{256*(tt&3)}")
    def readV(tt, buf):
        p("s_mov_b64 exec, s[16:17]")
        for mf in range(2):
            r = 130 + 2 * (tt & 3) + mf
            p(f"ds_read_b128 v[{VA[buf]+4*mf}:{VA[buf]+4*mf+3}], v{r} offset:{256*(tt>>2)}")
        p("s_mov_b64 exec, -1")
    def mS(buf, hi):
        s = S[buf]
        if not hi: p(f"v_mfma_f32_32x32x16_bf16 v[{s}:{s+15}], v[{KL[buf]}:{KL[buf]+3}], v[8:11], 0")
        else: p(f"v_mfma_f32_32x32x16_bf16 v[{s}:{s+15}], v[{KH[buf]}:{KH[buf]+3}], v[12:15], v[{s}:{s+15}]")
    def mO(buf, mf):
        p(f"v_mfma_f32_32x32x16_bf16 v[96:111], v[{VA[buf]+4*mf}:{VA[buf]+4*mf+3}], v[{48+4*mf}:{51+4*mf}], v[96:111]")
    def exps(buf, a):
        for i in range(4 * a, 4 * a + 4):
            p(f"v_exp_f32 v{S[buf]+i}, v{S[buf]+i}")
    def advance(ctr):
        p("v_mov_b32 v128, v140")
        p("v_mov_b32 v129, v141")
        p(f"s_add_u32 s18, {ctr}, 2")
        p("s_and_b32 s19, s18, 3")
        p("s_bfe_u32 s18, s18, 0x20002")
        p("s_mul_i32 s18, s18, 40960")
        p("s_lshl_b32 s20, s19, 12")
        p("s_add_u32 s20, s20, s18")
        p("s_lshl_b32 s19, s19, 10")
        p("s_add_u32 s19, s19, s18")
        p("v_add_u32 v140, s20, v138")
        p("v_add_u32 v141, s19, v139")
        p(f"s_and_b32 s18, {ctr}, 3")
        p("s_cmp_eq_u32 s18, 3")
        p("s_movk_i32 s19, 256")
        p(f"s_cselect_b32 s18, {40960-768}, s19")
        for r in range(130, 138): p(f"v_add_u32 v{r}, s18, v{r}")

    readK(0, 0); readK(1, 1)
    p("s_waitcnt lgkmcnt(2)")
    mS(0, False); mS(0, True)
    p("s_mov_b32 s11, 0")
    p("s_nop 7")
    p("attn_loop:")
    p("s_cmp_lg_u32 s11, 7")
    p("s_cbranch_scc1 attn_nostage")
    p("s_waitcnt vmcnt(0)")
    p("s_barrier")
    p("attn_nostage:")
    for tt in range(4):
        b = tt & 1
        p("s_waitcnt lgkmcnt(2)")
        mO(b ^ 1, 0)
        exps(b, 0)
        mO(b ^ 1, 1)
        readV(tt, b)
        exps(b, 1)
        p("s_waitcnt lgkmcnt(2)")
        mS(b ^ 1, False)
        exps(b, 2)
        mS(b ^ 1, True)
        readK(tt + 2, b)
        exps(b, 3)
        if tt == 3: advance("s11")
        elif tt in (0, 2):
            p("s_cmp_ge_u32 s11, 5")
            p(f"s_cbranch_scc1 attn_nodma{tt}")
            p("s_mov_b32 m0, s21")
            p("s_nop 0")
            p("buffer_load_dwordx4 v5, s[48:51], s21 offen lds")
            p("s_add_u32 s21, s21, 8192")
            p(f"attn_nodma{tt}:")
        else: p("s_nop 0")
        for i in range(8):
            p(f"v_cvt_pk_bf16_f32 v{48+i}, v{S[b]+2*i}, v{S[b]+2*i+1}")
    p("s_add_u32 s11, s11, 1")
    p("s_cmp_lt_u32 s11, 16")
    p("s_cbranch_scc1 attn_loop")
    p("s_waitcnt lgkmcnt(0)")
    mO(1, 0); mO(1, 1)
    if stamp:
        p("s_memtime s[84:85]")
        p("s_memrealtime s[94:95]")
        p("s_waitcnt lgkmcnt(0)")
        p("s_sub_u32 s82, s82, s80"); p("s_sub_u32 s84, s84, s80")
        p("s_mov_b32 s90, 65536"); p("s_mov_b32 s91, 0x00020000")
        p("v_mov_b32 v56, s82"); p("v_mov_b32 v57, s84")
        p("s_lshl_b32 s86, s4, 3")
        p("v_mov_b32 v58, s86")
        p("buffer_store_dwordx2 v[56:57], v58, s[88:91], 0 offen")
    p("attn_fin:")
    p("s_nop 15")
    p("s_nop 3")
    p("v_mov_b32 v58, v104")
    p("v_mov_b32 v59, v104")
    p("s_nop 1")
    p("v_permlane32_swap_b32 v58, v59")
    p(f"v_mov_b32 v57, {0x7f000000 if force_fb else f2u(2.0**-60)}")
    p("s_cmp_eq_u32 s11, 16")
    p("v_cmp_nge_f32 vcc, v59, v57")
    p("s_cbranch_scc0 attn_out")
    p("s_cbranch_vccnz attn_fb")
    p("attn_out:")
    p("v_rcp_f32 v59, v59")
    p("s_nop 0")
    for r in range(96, 108):
        p(f"v_mul_f32 v{r}, v{r}, v59")
    for i in range(6):
        p(f"v_cvt_pk_bf16_f32 v{48+i}, v{96+2*i}, v{97+2*i}")
    if not ofrag:
        p("v_lshl_add_u32 v57, v4, 3, v7")
        p("buffer_store_dwordx2 v[48:49], v57, s[52:55], 0 offen")
        p("buffer_store_dwordx2 v[50:51], v57, s[52:55], 0 offen offset:16")
        p("v_cmp_eq_u32 vcc, 0, v4")
        p("s_and_saveexec_b64 s[14:15], vcc")
        p("s_cbranch_execz attn_end")
        p("buffer_store_dwordx2 v[52:53], v57, s[52:55], 0 offen offset:32")
    else:
        p("v_lshrrev_b32 v56, 4, v6")
        p("v_mul_u32_u24 v56, 20480, v56")
        p("v_and_b32 v57, 15, v6")
        p("v_lshl_add_u32 v56, v57, 4, v56")
        p("s_mul_i32 s10, s5, 20")
        p("v_lshl_add_u32 v57, v4, 2, s10")
        for q4 in range(3):
            if q4: p("v_add_u32 v57, 8, v57")
            p("v_lshrrev_b32 v60, 3, v57")
            p("v_lshl_add_u32 v60, v60, 8, v56")
            p("v_bfe_u32 v61, v57, 2, 1")
            p("v_lshl_add_u32 v60, v61, 3, v60")
            if q4 == 2:
                p("v_cmp_eq_u32 vcc, 0, v4")
                p("s_and_saveexec_b64 s[14:15], vcc")
                p("s_cbranch_execz attn_end")
            p(f"buffer_store_dwordx2 v[{48+2*q4}:{49+2*q4}], v60, s[52:55], 0 offen")
    p("s_endpgm")

    p("attn_fb:")
    addr_init()
    p("v_mov_b32 v14, 0")
    p("v_mov_b32 v56, 0xff800000")
    p("s_mov_b32 s11, 32")
    p("attn_fb_loop:")
    for tt in range(4):
        readK(tt, 0)
        readV(tt, 0)
        p("s_waitcnt lgkmcnt(0)")
        mS(0, False); mS(0, True)
        p("s_nop 15")
        p("s_nop 3")
        R = lambda i: f"v{64+i}"
        p(f"v_max3_f32 v58, {R(0)}, {R(1)}, {R(2)}")
        p(f"v_max3_f32 v59, {R(3)}, {R(4)}, {R(5)}")
        p(f"v_max3_f32 v60, {R(6)}, {R(7)}, {R(8)}")
        p(f"v_max3_f32 v61, {R(9)}, {R(10)}, {R(11)}")
        p(f"v_max3_f32 v62, {R(12)}, {R(13)}, {R(14)}")
        p(f"v_max3_f32 v58, v58, v59, {R(15)}")
        p(f"v_max3_f32 v60, v60, v61, v62")
        p(f"v_max3_f32 v58, v58, v60, v56")
        p("v_mov_b32 v59, v58")
        p("s_nop 1")
        p("v_permlane32_swap_b32 v58, v59")
        p("v_max_f32 v58, v58, v59")
        p("v_sub_f32 v59, v56, v58")
        p("v_exp_f32 v59, v59")
        p("v_mov_b32 v56, v58")
        for r in range(96, 108):
            p(f"v_mul_f32 v{r}, v{r}, v59")
        for i in range(16):
            p(f"v_sub_f32 {R(i)}, {R(i)}, v56")
        for i in range(16):
            p(f"v_exp_f32 {R(i)}, {R(i)}")
        p("s_nop 0")
        for i in range(8):
            p(f"v_cvt_pk_bf16_f32 v{48+i}, {R(2*i)}, {R(2*i+1)}")
        p("s_nop 1")
        mO(0, 0); mO(0, 1)
    advance("s11")
    p("s_add_u32 s11, s11, 1")
    p("s_cmp_lt_u32 s11, 48")
    p("s_cbranch_scc1 attn_fb_loop")
    p("s_branch attn_fin")
    p("attn_end:")
    p("s_endpgm")
    return name, 144, (NWG, 512, KV_SIZE)
```

```python
from common import *

def gen_conv(p, stamp=False):
    name = "conv_kernel"
    header(p, name)
    NWG = 160
    UREG = 7680; CS = 4160; WREG = UREG + 4 * CS; WBASE = 16384
    p(f"s_cmp_ge_u32 s2, {NWG+21}")
    p("s_cbranch_scc1 conv_end")
    load_ptrs(p)
    st = Stamps(p, stamp); st.init()
    p("v_lshrrev_b32 v2, 6, v0")
    p("v_and_b32 v1, 63, v0")
    p("v_and_b32 v3, 31, v0")
    p("v_readfirstlane_b32 s3, v2")
    p("v_bfe_u32 v4, v0, 5, 1")
    p("s_lshl_b32 s4, s2, 2")
    p("s_add_u32 s4, s4, s3")
    p("s_lshl_b32 s5, s4, 1")
    p("s_and_b32 s5, s5, 0xfffffffc")
    p("s_waitcnt lgkmcnt(0)")
    p(f"s_cmp_ge_u32 s2, {NWG}")
    p("s_cbranch_scc1 conv_w")
    srd(p, 44, 40, WS_XTA, XSZ)
    srd(p, 48, 40, WS_XTB, XSZ)
    srd(p, 52, 40, WS_KREV, 640 * KREV_STRIDE)
    srd(p, 56, 40, WS_STATS, 2048 * 8)
    p("s_load_dword s6, s[28:29], s5")
    p("v_lshlrev_b32 v12, 3, v0")
    for k in range(8):
        p(f"buffer_load_dwordx2 v[{64+2*k}:{65+2*k}], v12, s[56:59], 0 offen offset:{2048*k}" if k < 2 else
          f"buffer_load_dwordx2 v[{64+2*k}:{65+2*k}], v12, s[56:59], s{60+k//2} offen offset:{2048*(k%2)}")
        if k == 0:
            for q in range(1, 4): p(f"s_movk_i32 s{60+q}, {4096*q}")
    p("s_lshl_b32 s7, s4, 12")
    p(f"s_mul_i32 s8, s4, {KREV_STRIDE}")
    p("v_lshlrev_b32 v6, 4, v1")
    for k in range(4):
        p(f"buffer_load_dwordx4 v[{128+4*k}:{131+4*k}], v6, s[44:47], s7 offen offset:{1024*k}")
    p(f"s_mul_i32 s9, s3, {WREG}")
    p(f"s_add_u32 s9, s9, {WBASE}")
    p(f"s_add_u32 s10, s9, {UREG}")
    p("v_add_u32 v7, s9, v6")
    for i in range(4): p(f"v_mov_b32 v{8+i}, 0")
    for k in range(3):
        p(f"ds_write_b128 v7, v[8:11] offset:{1024*k}")
    for k in range(8):
        b = 64 + 2 * k
        p(f"s_waitcnt vmcnt({(7-k)+4})")
        ln_row_params(p, f"v{b}", f"v{b+1}", "v80", "v81", "v82", "v83")
        p(f"ds_write_b64 v12, v[80:81] offset:{2048*k}")
    p("s_waitcnt lgkmcnt(0)")
    p("s_barrier")
    st.mark()
    p("v_lshlrev_b32 v14, 6, v1")
    for k in range(4):
        for i in range(4):
            p(f"ds_read_b128 v[{64+16*k+4*i}:{67+16*k+4*i}], v14 offset:{4096*k+16*i}")
    p("s_and_b32 s11, s4, 1")
    p("s_lshl_b32 s11, s11, 4")
    p("s_lshr_b32 s6, s6, s11")
    p("s_lshl_b32 s6, s6, 16")
    p("v_lshrrev_b32 v15, 2, v1")
    p("v_mul_u32_u24 v15, 80, v15")
    p("v_and_b32 v16, 3, v1")
    p("v_lshl_add_u32 v15, v16, 4, v15")
    p("v_add_u32 v15, s9, v15")
    def kdma(k):
        if k == 4:
            p("v_cmp_gt_u32 vcc, 4, v1")
            p("s_and_saveexec_b64 s[14:15], vcc")
        for a in range(4):
            p(f"s_add_u32 s12, s10, {a*CS+1024*k}")
            p(f"s_add_u32 s13, s8, {(a&1)*4160+4*(a>>1)+1024*k}")
            p("s_mov_b32 m0, s12")
            p("s_nop 0")
            p("buffer_load_dwordx4 v6, s[52:55], s13 offen lds")
        if k == 4: p("s_mov_b64 exec, s[14:15]")
    p("s_waitcnt vmcnt(0)")
    kdma(4)
    p("s_waitcnt lgkmcnt(0)")
    for k in range(4):
        kdma(k)
        for i in range(4):
            x = f"v{128+4*k+i}"; sb = 64 + 16 * k + 4 * i
            p(f"v_lshlrev_b32 v20, 16, {x}")
            p(f"v_and_b32 v21, 0xffff0000, {x}")
            p(f"v_sub_f32 v20, v20, v{sb}")
            p(f"v_sub_f32 v21, v21, v{sb+2}")
            p(f"v_cvt_pk_bf16_f32 v22, v20, v21")
            p(f"v_lshlrev_b32 v20, 16, v22")
            p(f"v_and_b32 v21, 0xffff0000, v22")
            p(f"v_mul_f32 v20, v20, v{sb+1}")
            p(f"v_mul_f32 v21, v21, v{sb+3}")
            p(f"v_cvt_pk_bf16_f32 v{24+i}, v20, v21")
        p(f"ds_write_b128 v15, v[24:27] offset:{2480+1280*k}")
    p("v_mul_u32_u24 v60, 80, v3")
    p("v_lshl_add_u32 v60, v4, 4, v60")
    p("v_add_u32 v60, s9, v60")
    p("v_and_b32 v61, 3, v3")
    p("v_sub_u32 v61, 3, v61")
    p(f"v_mul_u32_u24 v61, {CS}, v61")
    p("v_lshrrev_b32 v62, 2, v3")
    p("v_lshlrev_b32 v62, 3, v62")
    p("v_sub_u32 v62, 56, v62")
    p("v_add_u32 v61, v61, v62")
    p("v_lshl_add_u32 v61, v4, 4, v61")
    p("v_add_u32 v61, s10, v61")
    p("v_lshlrev_b32 v5, 6, v3")
    p("v_lshl_add_u32 v5, v4, 3, v5")
    for a in range(2):
        for q4 in range(4):
            r = 160 + 2 * (4 * a + q4)
            p(f"buffer_load_dwordx2 v[{r}:{r+1}], v5, s[44:47], s7 offen offset:{2048*a+16*q4}")
    for i in range(32): p(f"v_mov_b32 v{128+i}, 0")
    p("s_waitcnt vmcnt(8) lgkmcnt(0)")
    st.mark()
    NBUF = 3
    def reads(s):
        base = 64 + 24 * (s % NBUF) if (s % NBUF) < 2 else 176
        n = 0
        for hf in range(2):
            p(f"ds_read_b64 v[{base+8+4*hf}:{base+8+4*hf+1}], v61 offset:{64*s+32*hf}"); n += 1
            p(f"ds_read_b64 v[{base+8+4*hf+2}:{base+8+4*hf+3}], v61 offset:{64*s+32*hf+8}"); n += 1
            p(f"ds_read_b128 v[{base+4*hf}:{base+4*hf+3}], v60 offset:{80*s+32*hf}"); n += 1
            if s >= 32:
                p(f"ds_read_b128 v[{base+16+4*hf}:{base+16+4*hf+3}], v60 offset:{80*(s-32)+32*hf}"); n += 1
        return n
    cnt = {}
    cnt[0] = reads(0); cnt[1] = reads(1)
    for s in range(64):
        if s + 2 < 64: cnt[s + 2] = reads(s + 2)
        n = cnt.get(s + 1, 0) + cnt.get(s + 2, 0)
        p(f"s_waitcnt lgkmcnt({min(n,15)})")
        base = 64 + 24 * (s % NBUF) if (s % NBUF) < 2 else 176
        for hf in range(2):
            A = f"v[{base+8+4*hf}:{base+8+4*hf+3}]"
            p(f"v_mfma_f32_32x32x16_bf16 v[144:159], {A}, v[{base+4*hf}:{base+4*hf+3}], v[144:159]")
            if s >= 32:
                p(f"v_mfma_f32_32x32x16_bf16 v[128:143], {A}, v[{base+16+4*hf}:{base+16+4*hf+3}], v[128:143]")
    st.mark()
    p("v_mul_u32_u24 v6, 80, v3")
    p("v_lshl_add_u32 v6, v4, 3, v6")
    p("v_add_u32 v6, s9, v6")
    for a in range(2):
        for q4 in range(4):
            r = 80 + 2 * (4 * a + q4)
            p(f"ds_read_b64 v[{r}:{r+1}], v6 offset:{2480+2560*a+16*q4}")
    p("v_lshrrev_b32 v7, 1, v3")
    p("v_mul_u32_u24 v7, 81920, v7")
    p("v_and_b32 v8, 1, v3")
    p("v_lshl_add_u32 v7, v8, 6, v7")
    p("v_lshl_add_u32 v7, v4, 3, v7")
    p("s_lshl_b32 s12, s4, 7")
    p(f"s_add_u32 s13, s12, {16*81920}")
    p("s_nop 7")
    p("s_waitcnt vmcnt(0) lgkmcnt(0)")
    for a in range(2):
        for q4 in range(4):
            xr = 160 + 2 * (4 * a + q4); hr = 80 + 2 * (4 * a + q4)
            for j in range(4):
                y = f"v{128+16*a+4*q4+j}"
                hsrc = f"v{hr+j//2}"; xsrc = f"v{xr+j//2}"
                if j % 2 == 0:
                    p(f"v_lshlrev_b32 v20, 16, {hsrc}")
                    p(f"v_lshlrev_b32 v21, 16, {xsrc}")
                else:
                    p(f"v_and_b32 v20, 0xffff0000, {hsrc}")
                    p(f"v_and_b32 v21, 0xffff0000, {xsrc}")
                p(f"v_mul_f32 v20, s6, v20")
                bf16r(p, "v20", "v20")
                bf16r(p, y, y)
                p(f"v_add_f32 v20, v20, {y}")
                bf16r(p, "v20", "v20")
                p(f"v_add_f32 v{24+j}, v20, v21")
            p(f"v_cvt_pk_bf16_f32 v28, v24, v25")
            p(f"v_cvt_pk_bf16_f32 v29, v26, v27")
            p(f"buffer_store_dwordx2 v[28:29], v7, s[48:51], s{12+a} offen offset:{16*q4}")
    st.mark()
    st.dump("s4", "v30", "v31", 4)
    p("s_endpgm")
    p("conv_w:")
    p("v_and_b32 v5, 15, v0")
    p("v_bfe_u32 v6, v0, 4, 2")
    srd(p, 76, 32, 0, 640 * 640 * 2)
    srd(p, 80, 34, 0, 640 * 20 * 2)
    srd(p, 84, 36, 0, 640 * 20 * 2)
    srd(p, 88, 38, 0, 640 * 640 * 2)
    srd(p, 92, 40, WS_WT, 0x200000)
    p(f"v_mov_b32 v15, {WS_KMAX+16}")
    p("buffer_load_dword v14, v15, s[92:95], 0 offen")
    p("s_waitcnt vmcnt(0)")
    p("v_readfirstlane_b32 s4, v14")
    p("s_cmp_eq_u32 s4, 0x5a17")
    p("s_cbranch_scc1 conv_end")
    p("s_sub_u32 s4, s2, 160")
    tile_swz_voffs(p, "v8", "v9", "v1", "v10", "v11", 1280)
    tr_addr(p, "v12", "v1", "s3", "v10", "v11")
    p("v_add_u32 v13, 40960, v12")
    p("v_lshlrev_b32 v7, 4, v1")
    p("s_cmp_eq_u32 s4, 20")
    p("s_cbranch_scc1 conv_w_kv")
    p("s_mul_i32 s9, s3, 20480")
    p("s_mul_i32 s8, s3, 204800")
    p("s_cmp_ge_u32 s4, 10")
    p("s_cbranch_scc1 conv_w_o")
    def wdma(srdn, scol):
        p(f"s_lshl_b32 s10, {scol}, 7")
        p("s_add_u32 s8, s8, s10")
        for k in range(20):
            p(f"s_add_u32 s10, s9, {1024*k}")
            p(f"s_add_u32 s11, s8, {10240*k}")
            p("s_mov_b32 m0, s10")
            p("s_nop 0")
            p(f"buffer_load_dwordx4 {'v8' if k%2==0 else 'v9'}, s[{srdn}:{srdn+3}], s11 offen lds")
    wdma(76, "s4")
    p("s_lshl_b32 s5, s4, 2")
    p("s_add_u32 s5, s5, s3")
    p("s_cmp_ge_u32 s5, 37")
    p("s_cselect_b32 s6, 2, 0")
    p("s_add_u32 s5, s5, s6")
    p("s_mul_i32 s6, s5, 20480")
    p("s_branch conv_w_common")
    p("conv_w_o:")
    p("s_sub_u32 s4, s4, 10")
    wdma(88, "s4")
    p("s_lshl_b32 s5, s4, 2")
    p("s_add_u32 s5, s5, s3")
    p("s_mul_i32 s6, s5, 20480")
    p(f"s_add_u32 s6, s6, {WS_WOT}")
    p("s_movk_i32 s5, 60")
    p("s_branch conv_w_common")
    p("conv_w_kv:")
    for i in range(8): p(f"v_mov_b32 v{40+i}, 0")
    p("v_mov_b32 v14, 0")
    p(f"v_mov_b32 v15, {WS_KMAX}")
    p("buffer_store_dword v14, v15, s[92:95], 0 offen")
    for it in range(3):
        p(f"v_add_u32 v14, {256*it}, v0")
        p("v_mul_u32_u24 v15, 40, v14")
        for (sr, base) in ((80, 16), (84, 28)):
            p(f"buffer_load_dwordx4 v[{base}:{base+3}], v15, s[{sr}:{sr+3}], 0 offen")
            p(f"buffer_load_dwordx4 v[{base+4}:{base+7}], v15, s[{sr}:{sr+3}], 0 offen offset:16")
            p(f"buffer_load_dwordx2 v[{base+8}:{base+9}], v15, s[{sr}:{sr+3}], 0 offen offset:32")
        p("v_mov_b32 v26, 0"); p("v_mov_b32 v27, 0"); p("v_mov_b32 v38, 0"); p("v_mov_b32 v39, 0")
        p("v_bfe_u32 v48, v14, 1, 1")
        p("v_bfe_u32 v49, v14, 3, 1")
        p("v_lshl_or_b32 v48, v49, 1, v48")
        p("v_lshlrev_b32 v49, 7, v14")
        for u in range(4):
            p(f"v_xor_b32 v{50+u}, {u}, v48")
            p(f"v_lshl_add_u32 v{50+u}, v{50+u}, 5, v49")
        p("v_cmp_gt_u32 vcc, 640, v14")
        p("s_and_saveexec_b64 s[14:15], vcc")
        p("s_waitcnt vmcnt(0)")
        p("ds_write_b128 v50, v[16:19]"); p("ds_write_b128 v50, v[20:23] offset:16")
        p("ds_write_b128 v51, v[24:27]"); p("ds_write_b128 v51, v[40:43] offset:16")
        p("ds_write_b128 v52, v[28:31]"); p("ds_write_b128 v52, v[32:35] offset:16")
        p("ds_write_b128 v53, v[36:39]"); p("ds_write_b128 v53, v[40:43] offset:16")
        p("s_mov_b64 exec, s[14:15]")
    p("s_lshr_b32 s5, s3, 1")
    p("s_mul_i32 s5, s5, 5")
    p("s_and_b32 s6, s3, 1")
    p("s_add_u32 s5, s5, s6")
    p("s_add_u32 s5, s5, 37")
    p("s_mul_i32 s6, s5, 20480")
    p("conv_w_common:")
    p("s_waitcnt vmcnt(0) lgkmcnt(0)")
    p("s_barrier")
    for ks in range(20):
        va = "v12" if ks < 10 else "v13"
        o = 4096 * (ks % 10)
        p(f"ds_read_b64_tr_b16 v[{64+4*ks}:{64+4*ks+1}], {va} offset:{o}")
        p(f"ds_read_b64_tr_b16 v[{64+4*ks+2}:{64+4*ks+3}], {va} offset:{o+512}")
    for i in range(4): p(f"v_mov_b32 v{16+i}, 0x3f803f80")
    p("s_add_u32 s7, s6, 4096"); p("s_add_u32 s8, s6, 8192"); p("s_add_u32 s9, s6, 12288"); p("s_add_u32 s10, s6, 16384")
    p("s_waitcnt lgkmcnt(0)")
    for ks in range(20):
        p(f"buffer_store_dwordx4 v[{64+4*ks}:{64+4*ks+3}], v7, s[92:95], s{6+ks//4} offen offset:{1024*(ks%4)}")
        p(f"v_mfma_f32_16x16x32_bf16 v[20:23], v[{64+4*ks}:{64+4*ks+3}], v[16:19], {'0' if ks==0 else 'v[20:23]'}")
    p("v_lshlrev_b32 v10, 4, v6")
    p("s_lshl_b32 s5, s5, 6")
    p(f"s_add_u32 s5, s5, {WS_CS}")
    p("v_cmp_eq_u32 vcc, 0, v5")
    p("s_and_saveexec_b64 s[14:15], vcc")
    p("s_cbranch_execz conv_end")
    p("s_nop 4")
    p("buffer_store_dwordx4 v[20:23], v10, s[92:95], s5 offen")
    p("conv_end:")
    p("s_endpgm")
    return name, 220, (NWG + 21, 256, WBASE + 4 * WREG)
```

```python
from common import *

def gen_oproj(p, final):
    name = "oprojf_kernel" if final else "oprojt_kernel"
    pre = "opf" if final else "opt"
    header(p, name)
    NWG = 256
    p(f"s_cmp_ge_u32 s2, {NWG}")
    p(f"s_cbranch_scc1 {pre}_end")
    load_ptrs(p)
    p("v_lshrrev_b32 v2, 6, v0")
    p("v_and_b32 v1, 63, v0")
    p("v_and_b32 v5, 15, v0")
    p("v_readfirstlane_b32 s3, v2")
    p("v_bfe_u32 v6, v0, 4, 2")
    p("v_lshlrev_b32 v7, 4, v1")
    p("s_and_b32 s4, s2, 7")
    p("s_lshl_b32 s4, s4, 2")
    p("s_bfe_u32 s5, s2, 0x20003")
    p("s_add_u32 s4, s4, s5")
    p("s_lshr_b32 s5, s2, 5")
    p("s_waitcnt lgkmcnt(0)")
    srd(p, 44, 40, WS_O, XSZ)
    srd(p, 48, 40, WS_WOT, 640 * 1280)
    if final:
        srd(p, 52, 40, WS_XR, XSZ)
        srd(p, 56, 42, 0, XSZ)
    else:
        srd(p, 52, 40, WS_XTB, XSZ)
        srd(p, 56, 40, WS_XTA, XSZ)
        srd(p, 60, 40, WS_STATS, 2048 * 8)
        srd(p, 64, 40, WS_KMAX, 64)
    vm = VM(p)
    p("s_mul_i32 s9, s3, 5120")
    p("s_mul_i32 s8, s5, 102400")
    p("s_add_u32 s8, s8, s9")
    def wdma(j):
        for k in range(5):
            p(f"s_add_u32 s26, s9, {20480*j+1024*k}")
            p(f"s_add_u32 s27, s8, {20480*j+1024*k}")
            p("s_mov_b32 m0, s26")
            p("s_nop 0")
            p(f"buffer_load_dwordx4 v7, s[48:51], s27 offen lds")
            vm.issue(("w", j))
    wdma(0)
    X = 64
    p("s_lshl_b32 s12, s4, 2")
    p("s_add_u32 s12, s12, s3")
    p("s_mul_i32 s13, s12, 20480")
    for q in range(1, 5): p(f"s_add_u32 s{13+q}, s13, {4096*q}")
    for ks in range(20):
        p(f"buffer_load_dwordx4 v[{X+4*ks}:{X+4*ks+3}], v7, s[44:47], s{13+ks//4} offen offset:{1024*(ks%4)}")
        vm.issue("a")
    p("s_lshl_b32 s12, s12, 4")
    if final:
        p("v_add_u32 v8, s12, v5")
        p("s_movk_i32 s10, 1280")
        p("v_mul_lo_u32 v8, v8, s10")
        p("v_lshl_add_u32 v12, v6, 3, v8")
        p("s_mul_i32 s10, s5, 160")
        for i in range(5):
            p(f"buffer_load_dwordx2 v[{32+2*i}:{33+2*i}], v12, s[52:55], s10 offen offset:{32*i}")
            vm.issue("x")
    else:
        p("v_lshlrev_b32 v12, 7, v5")
        p("v_lshl_add_u32 v12, v6, 3, v12")
        p("s_mul_i32 s10, s4, 81920")
        p("s_mul_i32 s11, s5, 10240")
        p("s_add_u32 s10, s10, s11")
        p("s_lshl_b32 s11, s3, 5")
        p("s_add_u32 s10, s10, s11")
        for i in range(5):
            p(f"buffer_load_dwordx2 v[{32+2*i}:{33+2*i}], v12, s[52:55], s10 offen offset:{2048*i}" if i < 2 else
              f"buffer_load_dwordx2 v[{32+2*i}:{33+2*i}], v12, s[52:55], s18 offen offset:{2048*(i-2)}" if i < 4 else
              f"buffer_load_dwordx2 v[{32+2*i}:{33+2*i}], v12, s[52:55], s19 offen")
            vm.issue("x")
            if i == 0:
                p("s_add_u32 s18, s10, 4096"); p("s_add_u32 s19, s10, 8192")
        p("v_lshlrev_b32 v13, 12, v5")
        p("v_lshl_add_u32 v13, v6, 3, v13")
        p("s_lshl_b32 s11, s12, 1")
        p("v_add_u32 v13, s11, v13")
        p("s_mul_i32 s20, s5, 327680")
        for i in range(1, 5): p(f"s_add_u32 s{20+i}, s20, {65536*i}")
        for i in range(8): p(f"v_mov_b32 v{16+i}, 0")
    p("v_add_u32 v29, 61440, v7")
    WB = 144; NB = 8; ACC = [176, 180]
    wdma(1)
    for j in range(5):
        vm.wait(("w", j))
        p("s_barrier")
        if j + 2 < 5: wdma(j + 2)
        if j == 0: vm.wait("x")
        acc = ACC[j & 1]
        va, off0 = ("v7", 20480 * j) if j < 3 else ("v29", 20480 * (j - 3))
        PF = 6
        for s in range(PF):
            p(f"ds_read_b128 v[{WB+4*(s%NB)}:{WB+4*(s%NB)+3}], {va} offset:{off0+1024*s}")
        for s in range(20):
            if s + PF < 20:
                q = s + PF
                p(f"ds_read_b128 v[{WB+4*(q%NB)}:{WB+4*(q%NB)+3}], {va} offset:{off0+1024*q}")
            p(f"s_waitcnt lgkmcnt({min(PF, 19-s)})")
            W = f"v[{WB+4*(s%NB)}:{WB+4*(s%NB)+3}]"; Hh = f"v[{X+4*s}:{X+4*s+3}]"
            A, B = (W, Hh) if final else (Hh, W)
            p(f"v_mfma_f32_16x16x32_bf16 v[{acc}:{acc+3}], {A}, {B}, {'0' if s==0 else f'v[{acc}:{acc+3}]'}")
        p("s_nop 7")
        for i in range(4):
            a = f"v{acc+i}"
            bf16r(p, a, a)
            src = f"v{32+2*j+i//2}"
            if i % 2 == 0: p(f"v_lshlrev_b32 v24, 16, {src}")
            else: p(f"v_and_b32 v24, 0xffff0000, {src}")
            p(f"v_add_f32 v{44+i}, v24, {a}")
        p("v_cvt_pk_bf16_f32 v30, v44, v45")
        p("v_cvt_pk_bf16_f32 v31, v46, v47")
        if final:
            p(f"buffer_store_dwordx2 v[30:31], v12, s[56:59], s10 offen offset:{32*j}"); vm.issue("st")
        else:
            p(f"buffer_store_dwordx2 v[30:31], v13, s[56:59], s{20+j} offen"); vm.issue("st")
            for i in range(4):
                src = f"v{30+i//2}"
                if i % 2 == 0: p(f"v_lshlrev_b32 v24, 16, {src}")
                else: p(f"v_and_b32 v24, 0xffff0000, {src}")
                p(f"v_add_f32 v{16+i}, v{16+i}, v24")
                p(f"v_fma_f32 v{20+i}, v24, v24, v{20+i}")
    if not final:
        row16_sum(p, [f"v{16+i}" for i in range(8)])
        p("v_lshlrev_b32 v14, 2, v6")
        p("v_add_u32 v14, s12, v14")
        p("v_lshlrev_b32 v14, 3, v14")
        p("v_mov_b32 v15, 0")
        p("v_cmp_eq_u32 vcc, 0, v5")
        p("s_and_saveexec_b64 s[14:15], vcc")
        p(f"s_cbranch_execz {pre}_end")
        for i in range(4):
            p(f"buffer_atomic_add_f32 v{16+i}, v14, s[60:63], 0 offen offset:{8*i}")
            p(f"buffer_atomic_add_f32 v{20+i}, v14, s[60:63], 0 offen offset:{8*i+4}")
        p("s_cmp_lg_u32 s2, 0")
        p(f"s_cbranch_scc1 {pre}_end")
        p("buffer_store_dword v15, v15, s[64:67], 0 offen")
    p(f"{pre}_end:")
    p("s_endpgm")
    return name, 184, (NWG, 256, 102400)
```

```python
from common import *

def split_hilo(p, X, hi, lo, tmp):
    for i in range(4):
        p(f"v_cvt_pk_bf16_f32 {hi[i]}, {X[2*i]}, {X[2*i+1]}")
    for i in range(4):
        p(f"v_lshlrev_b32 {tmp[0]}, 16, {hi[i]}")
        p(f"v_and_b32 {tmp[1]}, 0xffff0000, {hi[i]}")
        p(f"v_sub_f32 {X[2*i]}, {X[2*i]}, {tmp[0]}")
        p(f"v_sub_f32 {X[2*i+1]}, {X[2*i+1]}, {tmp[1]}")
        p(f"v_cvt_pk_bf16_f32 {lo[i]}, {X[2*i]}, {X[2*i+1]}")

def transposed_store_stats_tile(p, acc, vaddr, soff, srd_out, tmp, ssum, ssq):
    pass

def gen_prep(p, stamp=False):
    name = "prep_kernel"
    header(p, name)
    NK = 640; NLN = 32; NW = 0
    p(f"s_cmp_ge_u32 s2, {NK+NLN+NW}")
    p("s_cbranch_scc1 prep_end")
    load_ptrs(p)
    p("v_lshrrev_b32 v2, 6, v0")
    p("v_and_b32 v1, 63, v0")
    p("v_and_b32 v3, 31, v0")
    p("v_readfirstlane_b32 s3, v2")
    p("v_bfe_u32 v4, v0, 5, 1")
    p("v_and_b32 v5, 15, v0")
    p("v_bfe_u32 v6, v0, 4, 2")
    p("s_waitcnt lgkmcnt(0)")
    PSZ = 640 * 128 * 2
    srd(p, 44, 18, 0, PSZ); srd(p, 48, 20, 0, PSZ); srd(p, 52, 22, 0, PSZ); srd(p, 56, 24, 0, PSZ)
    srd(p, 60, 40, WS_KREV, 640 * KREV_STRIDE)
    srd(p, 64, 16, 0, XSZ)
    srd(p, 68, 40, WS_XTA, XSZ)
    srd(p, 72, 40, WS_STATS, 2048 * 8)
    p("s_cmp_ge_u32 s2, 640")
    p("s_cbranch_scc1 prep_ln")

    st = Stamps(p, stamp); st.init()
    PART = 4096
    PSTR = 2052 * 4
    p("s_lshl_b32 s4, s2, 1")
    p("s_and_b32 s4, s4, 0xfffffffc")
    p("s_load_dword s5, s[26:27], s4")
    p("v_and_b32 v7, 127, v0")
    p("s_lshl_b32 s6, s2, 8")
    p("v_lshlrev_b32 v8, 1, v7")
    p("buffer_load_ushort v10, v8, s[44:47], s6 offen")
    p("buffer_load_ushort v11, v8, s[48:51], s6 offen")
    p("buffer_load_ushort v12, v8, s[52:55], s6 offen")
    p("buffer_load_ushort v13, v8, s[56:59], s6 offen")
    p("s_and_b32 s7, s2, 1")
    p("s_lshl_b32 s7, s7, 4")
    p("s_waitcnt lgkmcnt(0)")
    p("s_lshr_b32 s5, s5, s7")
    p("s_lshl_b32 s5, s5, 16")
    p(f"v_mov_b32 v14, s5")
    p(f"v_mul_f32 v14, {LOG2E}, v14")
    p("v_exp_f32 v14, v14")
    p("s_waitcnt vmcnt(0)")
    bf16r(p, "v14", "v14")
    p("v_lshlrev_b32 v10, 16, v10")
    p("v_lshlrev_b32 v11, 16, v11")
    p("v_lshlrev_b32 v12, 16, v12")
    p("v_lshlrev_b32 v13, 16, v13")
    p(f"v_mul_f32 v10, {LOG2E}, v10")
    p("v_exp_f32 v10, v10")
    p("v_mul_f32 v17, v11, v14")
    bf16r(p, "v10", "v10")
    p("v_mul_f32 v16, v10, v14")
    p(f"v_mul_f32 v16, 0xbfb8aa3b, v16")
    p(f"v_mul_f32 v17, {INV2PI}, v17")
    p("v_mul_f32 v18, v12, v14")
    p("v_mul_f32 v19, v13, v14")
    p("v_mul_f32 v18, 0x46000000, v18")
    p("v_mul_f32 v19, 0x46000000, v19")
    p("v_mul_f32 v22, 0x42000000, v16")
    p("v_mul_f32 v23, 0x42000000, v17")
    p("v_exp_f32 v22, v22")
    p("v_fract_f32 v23, v23")
    p("v_cos_f32 v20, v23")
    p("v_sin_f32 v21, v23")
    p("v_lshlrev_b32 v9, 5, v7")
    p("v_mul_f32 v20, v20, v22")
    p("v_mul_f32 v21, v21, v22")
    p("ds_write_b128 v9, v[16:19]")
    p("ds_write_b64 v9, v[20:21] offset:16")
    p("s_waitcnt lgkmcnt(0)")
    p("s_barrier")
    st.mark()
    p("s_lshl_b32 s8, s3, 10")
    p("v_lshlrev_b32 v9, 5, v3")
    p("v_add_u32 v9, s8, v9")
    p("ds_read_b128 v[16:19], v9")
    p("v_cvt_f32_u32 v21, v3")
    p("v_mul_f32 v20, 0x42800000, v21")
    p("s_waitcnt lgkmcnt(0)")
    p("v_mul_f32 v24, 0x45000000, v16")
    p("v_mul_f32 v25, 0x45000000, v17")
    p("v_exp_f32 v24, v24")
    p("v_fract_f32 v25, v25")
    p("v_cos_f32 v26, v25")
    p("v_sin_f32 v27, v25")
    p("v_mul_f32 v26, v18, v26")
    p("v_fma_f32 v26, -v19, v27, v26")
    p("v_mul_f32 v26, v26, v24")
    p("v_cmp_gt_u32 vcc, 32, v1")
    p("s_nop 1")
    p("v_cndmask_b32 v26, 0, v26, vcc")
    p("s_nop 1")
    row16_sum(p, ["v26"])
    p("s_nop 0")
    p("v_readlane_b32 s9, v26, 0")
    p("v_readlane_b32 s10, v26, 16")
    p("s_mul_i32 s11, s3, " + str(PSTR))
    p(f"s_add_u32 s11, s11, {PART}")
    p("v_mov_b32 v26, s9")
    p("v_add_f32 v26, s10, v26")
    p(f"v_mov_b32 v27, s11")
    p("ds_write_b32 v27, v26 offset:8192")
    p("v_lshlrev_b32 v9, 7, v4")
    p("v_add_u32 v9, s8, v9")
    XA = [f"v{32+i}" for i in range(8)]
    XB0 = [f"v{40+i}" for i in range(8)]
    XB1 = [f"v{48+i}" for i in range(8)]
    PB = [[104 + 24 * (ks & 1) + 6 * j for j in range(4)] for ks in range(4)]
    def rdparams(ks):
        for j in range(4):
            P = PB[ks][j]
            p(f"ds_read_b128 v[{P}:{P+3}], v9 offset:{ks*256+j*32}")
            p(f"ds_read_b64 v[{P+4}:{P+5}], v9 offset:{ks*256+j*32+16}")
    rdparams(0)
    for ks in range(4):
        if ks < 3: rdparams(ks + 1)
        p(f"s_waitcnt lgkmcnt({8 if ks < 3 else 0})")
        for (X, pv, isA) in ((XA, "v20", True), (XB0, "v21", False)):
            for j in range(4):
                P = PB[ks][j]; T = 56 + 4 * j
                p(f"v_mul_f32 v{T}, v{P}, {pv}")
                p(f"v_mul_f32 v{T+1}, v{P+1}, {pv}")
            for j in range(4):
                T = 56 + 4 * j
                p(f"v_exp_f32 v{T}, v{T}")
                p(f"v_fract_f32 v{T+1}, v{T+1}")
            for j in range(4):
                T = 56 + 4 * j
                p(f"v_cos_f32 v{T+2}, v{T+1}")
                p(f"v_sin_f32 v{T+3}, v{T+1}")
            p("s_nop 0")
            for j in range(4):
                P = PB[ks][j]; T = 56 + 4 * j
                if isA:
                    p(f"v_mul_f32 {X[2*j]}, v{P+2}, v{T+2}")
                    p(f"v_mul_f32 {X[2*j+1]}, v{P+2}, v{T+3}")
                    p(f"v_fma_f32 {X[2*j]}, -v{P+3}, v{T+3}, {X[2*j]}")
                    p(f"v_fma_f32 {X[2*j+1]}, v{P+3}, v{T+2}, {X[2*j+1]}")
                    p(f"v_mul_f32 {X[2*j]}, {X[2*j]}, v{T}")
                    p(f"v_mul_f32 {X[2*j+1]}, {X[2*j+1]}, v{T}")
                else:
                    p(f"v_mul_f32 {X[2*j]}, v{T}, v{T+2}")
                    p(f"v_mul_f32 {X[2*j+1]}, -v{T}, v{T+3}")
        for j in range(4):
            P = PB[ks][j]
            p(f"v_mul_f32 {XB1[2*j]}, {XB0[2*j]}, v{P+4}")
            p(f"v_mul_f32 {XB1[2*j+1]}, {XB0[2*j+1]}, v{P+4}")
            p(f"v_fma_f32 {XB1[2*j]}, {XB0[2*j+1]}, v{P+5}, {XB1[2*j]}")
            p(f"v_fma_f32 {XB1[2*j+1]}, -{XB0[2*j]}, v{P+5}, {XB1[2*j+1]}")
        for (X, F) in ((XA, 24), (XB0, 28), (XB1, 16)):
            for i in range(4):
                p(f"v_cvt_pk_f16_f32 v{F+i}, {X[2*i]}, {X[2*i+1]}")
        p("s_nop 1")
        c0 = "0" if ks == 0 else "v[72:87]"; c1 = "0" if ks == 0 else "v[88:103]"
        p(f"v_mfma_f32_32x32x16_f16 v[72:87], v[24:27], v[28:31], {c0}")
        p(f"v_mfma_f32_32x32x16_f16 v[88:103], v[24:27], v[16:19], {c1}")
    st.mark()
    p("v_lshlrev_b32 v9, 10, v4")
    p("v_lshl_add_u32 v9, v3, 2, v9")
    p("v_add_u32 v9, s11, v9")
    p("s_nop 15")
    for tb in range(2):
        for q in range(16):
            a = 8 * (q >> 2) + (q & 3)
            p(f"ds_write_b32 v9, v{72+16*tb+q} offset:{(64*a+32*tb)*4}")
    p("s_waitcnt lgkmcnt(0)")
    p("s_barrier")
    st.mark()
    p("v_lshlrev_b32 v10, 5, v0")
    p(f"v_mov_b32 v11, {PART+8192}")
    for w in range(4):
        p(f"ds_read_b128 v[{32+8*w}:{35+8*w}], v10 offset:{PART+w*PSTR}")
        p(f"ds_read_b128 v[{36+8*w}:{39+8*w}], v10 offset:{PART+w*PSTR+16}")
    for w in range(4):
        p(f"ds_read_b32 v{64+w}, v11 offset:{w*PSTR}")
    p("v_lshlrev_b32 v12, 3, v0")
    p("v_sub_u32 v12, 2047, v12")
    for j in range(9):
        p(f"v_subrev_u32 v{16+j}, {j}, v12")
        if j == 8: p("v_max_i32 v24, 0, v24")
        p(f"v_cvt_f32_u32 v{16+j}, v{16+j}")
    for j in range(9):
        bf16r(p, f"v{16+j}", f"v{16+j}")
    for j in range(9):
        p(f"v_cvt_u32_f32 v{16+j}, v{16+j}")
        p(f"v_lshlrev_b32 v{16+j}, 2, v{16+j}")
    p("s_waitcnt lgkmcnt(0)")
    for i in range(8):
        p(f"v_add_f32 v{32+i}, v{32+i}, v{40+i}")
        p(f"v_add_f32 v{48+i}, v{48+i}, v{56+i}")
        p(f"v_add_f32 v{32+i}, v{32+i}, v{48+i}")
    p("v_add_f32 v64, v64, v65"); p("v_add_f32 v66, v66, v67"); p("v_add_f32 v64, v64, v66")
    p("s_barrier")
    p(f"ds_write_b128 v10, v[32:35] offset:{PART}")
    p(f"ds_write_b128 v10, v[36:39] offset:{PART+16}")
    p("ds_write_b32 v11, v64")
    p("s_waitcnt lgkmcnt(0)")
    p("s_barrier")
    for j in range(9):
        p(f"ds_read_b32 v{32+j}, v{16+j} offset:{PART}")
    p("v_cmp_eq_u32 vcc, 255, v0")
    p("s_nop 0")
    p("s_waitcnt lgkmcnt(0)")
    p("v_cndmask_b32 v40, v40, 0, vcc")
    for j in range(9):
        p(f"v_mul_f32 v{32+j}, 0x39800000, v{32+j}")
    for i in range(4):
        p(f"v_cvt_pk_bf16_f32 v{64+i}, v{32+2*i}, v{33+2*i}")
        p(f"v_cvt_pk_bf16_f32 v{72+i}, v{33+2*i}, v{34+2*i}")
    st.mark()
    if stamp:
        p("s_lshl_b32 s13, s2, 2"); p("s_add_u32 s13, s13, s3")
    st.dump("s13", "v70", "v71", 4)
    p(f"s_mul_i32 s12, s2, {KREV_STRIDE}")
    p("v_lshlrev_b32 v11, 4, v0")
    p("buffer_store_dwordx4 v[64:67], v11, s[60:63], s12 offen")
    p("s_add_u32 s13, s12, 4160")
    p("buffer_store_dwordx4 v[72:75], v11, s[60:63], s13 offen")
    p("v_mov_b32 v68, 0"); p("v_mov_b32 v69, 0"); p("v_mov_b32 v70, 0"); p("v_mov_b32 v71, 0")
    p("v_add_u32 v11, 4096, v11")
    p("v_cmp_gt_u32 vcc, 4, v0")
    p("s_and_saveexec_b64 s[14:15], vcc")
    p("s_cbranch_execz prep_kg_done")
    p("buffer_store_dwordx4 v[68:71], v11, s[60:63], s12 offen")
    p("buffer_store_dwordx4 v[68:71], v11, s[60:63], s13 offen")
    p("prep_kg_done:")
    p("s_endpgm")

    p("prep_ln:")
    srd(p, 76, 40, WS_KMAX, 64)
    p("v_mov_b32 v8, 0"); p("v_mov_b32 v9, 16")
    p("buffer_store_dword v8, v9, s[76:79], 0 offen")
    p("s_sub_u32 s4, s2, 640")
    p("s_lshl_b32 s4, s4, 6")
    p("s_lshl_b32 s5, s3, 4")
    p("s_add_u32 s4, s4, s5")
    p("v_add_u32 v8, s4, v5")
    p("s_movk_i32 s6, 1280")
    p("v_mul_lo_u32 v8, v8, s6")
    p("v_lshl_add_u32 v8, v6, 4, v8")
    for s in range(20):
        p(f"buffer_load_dwordx4 v[{64+4*s}:{67+4*s}], v8, s[64:67], 0 offen offset:{64*s}")
    p("v_lshlrev_b32 v9, 3, v6")
    p("v_sub_u32 v9, v5, v9")
    p("v_mov_b32 v12, 0x3f80"); p("v_mov_b32 v13, 0x3f800000")
    for u in range(2):
        for i in range(4):
            p(f"v_cmp_eq_u32 vcc, {2*i-16*u}, v9")
            p(f"v_cmp_eq_u32 s[14:15], {2*i+1-16*u}, v9")
            p("s_nop 1")
            p(f"v_cndmask_b32 v{16+4*u+i}, 0, v12, vcc")
            p(f"v_cndmask_b32 v{16+4*u+i}, v{16+4*u+i}, v13, s[14:15]")
    for i in range(8):
        p(f"v_mov_b32 v{24+i}, 0")
    p("v_lshlrev_b32 v10, 12, v5")
    p("v_lshl_add_u32 v10, v6, 3, v10")
    p("s_lshl_b32 s7, s4, 1")
    p("v_add_u32 v10, s7, v10")
    p("s_mov_b32 s8, 0")
    for s in range(20):
        p(f"s_waitcnt vmcnt({min(63, (19-s) + 2*s)})")
        for u in range(2):
            c = 32 + 4 * u
            p(f"v_mfma_f32_16x16x32_bf16 v[{c}:{c+3}], v[{64+4*s}:{67+4*s}], v[{16+4*u}:{19+4*u}], 0")
        p("s_nop 7")
        for u in range(2):
            c = 32 + 4 * u
            for j in range(4):
                p(f"v_add_f32 v{24+j}, v{24+j}, v{c+j}")
                p(f"v_fma_f32 v{28+j}, v{c+j}, v{c+j}, v{28+j}")
            p(f"v_cvt_pk_bf16_f32 v{40+2*u}, v{c}, v{c+1}")
            p(f"v_cvt_pk_bf16_f32 v{41+2*u}, v{c+2}, v{c+3}")
            p(f"buffer_store_dwordx2 v[{40+2*u}:{41+2*u}], v10, s[68:71], s8 offen")
            p("s_add_u32 s8, s8, 65536")
    row16_sum(p, [f"v{24+i}" for i in range(8)])
    p("v_lshlrev_b32 v11, 2, v6")
    p("v_add_u32 v11, s4, v11")
    p("v_lshlrev_b32 v11, 3, v11")
    for j in range(4):
        p(f"v_mov_b32 v{44+2*j}, v{24+j}")
        p(f"v_mov_b32 v{45+2*j}, v{28+j}")
    p("v_cmp_eq_u32 vcc, 0, v5")
    p("s_and_saveexec_b64 s[14:15], vcc")
    p("s_cbranch_execz prep_ln_done")
    p("buffer_store_dwordx4 v[44:47], v11, s[72:75], 0 offen")
    p("buffer_store_dwordx4 v[48:51], v11, s[72:75], 0 offen offset:16")
    p("prep_ln_done:")
    p("s_endpgm")

    p("prep_end:")
    p("s_endpgm")
    return name, 152, (NK + NLN + NW, 256, 4096 + 4 * 2052 * 4)
```

```python
from common import *
import struct, math, copy

def f2u(x): return struct.unpack('<I', struct.pack('<f', x))[0]

def gen_qkv(p, stamp=False):
    name = "qkv_kernel"
    header(p, name)
    NWG = 256
    CSC = f2u((20 ** -0.5) * math.log2(math.e))
    XT = 81920
    p(f"s_cmp_ge_u32 s2, {NWG}")
    p("s_cbranch_scc1 qkv_end")
    load_ptrs(p)
    st = Stamps(p, stamp); st.init()
    p("v_lshrrev_b32 v2, 6, v0")
    p("v_and_b32 v1, 63, v0")
    p("v_and_b32 v5, 15, v0")
    p("v_readfirstlane_b32 s3, v2")
    p("v_bfe_u32 v6, v0, 4, 2")
    tile_swz_voffs(p, "v8", "v9", "v1", "v10", "v11", 128)
    p("v_lshlrev_b32 v7, 4, v1")
    p("s_and_b32 s4, s2, 7")
    p("s_lshl_b32 s4, s4, 2")
    p("s_bfe_u32 s5, s2, 0x20003")
    p("s_add_u32 s4, s4, s5")
    p("s_lshr_b32 s5, s2, 5")
    p("s_mul_i32 s6, s5, 6")
    p("s_mul_i32 s7, s5, 5")
    p("s_add_u32 s7, s7, 4")
    p("s_cmp_lt_u32 s5, 4")
    p("s_cselect_b32 s6, s6, s7")
    p("s_waitcnt lgkmcnt(0)")
    srd(p, 44, 40, WS_XTB, XSZ)
    srd(p, 48, 40, WS_WT, 44 * 20480)
    srd(p, 52, 40, WS_Q, XSZ)
    srd(p, 56, 40, WS_KV, KV_SIZE)
    srd(p, 60, 40, WS_XR, XSZ)
    srd(p, 64, 40, WS_CS, 0x8000 + 64)
    srd(p, 72, 40, WS_STATS, 2048 * 8)
    vm = VM(p)
    p(f"s_mul_i32 s8, s4, {XT}")
    p("s_mul_i32 s9, s3, 20480")
    p("s_add_u32 s8, s8, s9")
    for k in range(20):
        p(f"s_add_u32 s10, s9, {1024*k}")
        p(f"s_add_u32 s11, s8, {1024*k}")
        p("s_mov_b32 m0, s10")
        p("s_nop 0")
        p(f"buffer_load_dwordx4 {'v8' if k%2==0 else 'v9'}, s[44:47], s11 offen lds")
        vm.issue("x")
    p("s_mul_i32 s12, s6, 20480")
    p("s_mul_i32 s13, s3, 5120")
    p("s_add_u32 s12, s12, s13")
    def slot(j): return XT + 20480 * j if j < 4 else 20480 * (j - 4)
    def wdma(vmx, j):
        for k in range(5):
            p(f"s_add_u32 s10, s13, {slot(j)+1024*k}")
            p(f"s_add_u32 s11, s12, {20480*j+1024*k}")
            p("s_mov_b32 m0, s10")
            p("s_nop 0")
            p(f"buffer_load_dwordx4 v7, s[48:51], s11 offen lds")
            vmx.issue(("w", j))
    wdma(vm, 0)
    CSR = 184
    p("v_lshlrev_b32 v10, 4, v6")
    p("s_lshl_b32 s14, s6, 6")
    for j in range(6):
        p(f"buffer_load_dwordx4 v[{CSR+4*j}:{CSR+4*j+3}], v10, s[64:67], s14 offen offset:{64*j}")
        vm.issue("cs")
    wdma(vm, 1)
    tr_addr(p, "v12", "v1", "s3", "v10", "v11")
    p("v_add_u32 v13, 40960, v12")
    p("s_lshl_b32 s15, s4, 6")
    p("s_lshl_b32 s10, s3, 4")
    p("s_add_u32 s15, s15, s10")
    X = 64
    vm.wait("x")
    p("s_barrier")
    st.mark()
    for ks in range(20):
        va = "v12" if ks < 10 else "v13"
        o = 4096 * (ks % 10)
        p(f"ds_read_b64_tr_b16 v[{X+4*ks}:{X+4*ks+1}], {va} offset:{o}")
        p(f"ds_read_b64_tr_b16 v[{X+4*ks+2}:{X+4*ks+3}], {va} offset:{o+512}")
    p("v_mov_b32 v16, 0x3f803f80"); p("v_mov_b32 v17, 0x3f803f80")
    p("v_mov_b32 v18, 0x3f803f80"); p("v_mov_b32 v19, 0x3f803f80")
    wdma(vm, 2)
    p("s_waitcnt lgkmcnt(0)")
    SQ = 208; SM = 212
    for ks in range(20):
        xf = f"v[{X+4*ks}:{X+4*ks+3}]"
        p(f"v_mfma_f32_16x16x32_bf16 v[{SQ}:{SQ+3}], {xf}, {xf}, {'0' if ks==0 else f'v[{SQ}:{SQ+3}]'}")
        p(f"v_mfma_f32_16x16x32_bf16 v[{SM}:{SM+3}], v[16:19], {xf}, {'0' if ks==0 else f'v[{SM}:{SM+3}]'}")
    wdma(vm, 3)
    p("v_add_u32 v14, s15, v5")
    p("s_movk_i32 s10, 1280")
    p("v_mul_lo_u32 v15, v14, s10")
    p("v_and_b32 v10, 3, v5")
    p("v_cmp_eq_u32 vcc, 1, v10")
    p("v_cmp_eq_u32 s[68:69], 2, v10")
    p("v_cmp_eq_u32 s[70:71], 3, v10")
    p("v_lshrrev_b32 v11, 2, v5")
    p("v_lshl_add_u32 v11, v11, 4, v5")
    p("v_lshlrev_b32 v11, 2, v11")
    p(f"v_cndmask_b32 v20, v{SQ}, v{SQ+1}, vcc")
    p(f"v_cndmask_b32 v20, v20, v{SQ+2}, s[68:69]")
    p(f"v_cndmask_b32 v20, v20, v{SQ+3}, s[70:71]")
    p("ds_bpermute_b32 v22, v11, v20")
    p("s_waitcnt lgkmcnt(0)")
    ln_row_params(p, f"v{SM}", "v22", "v24", "v25", "v26", "v27")
    p(f"v_mul_f32 v26, {CSC}, v25")
    p("v_lshl_add_u32 v28, v6, 3, v15")
    p("s_lshl_b32 s16, s6, 5")
    p("s_cmp_eq_u32 s5, 7")
    p("s_cselect_b32 s17, 64, 0")
    p("s_sub_u32 s16, s16, s17")
    p("s_lshr_b32 s18, s15, 9")
    p("s_mul_i32 s18, s18, 40960")
    p("v_add_u32 v29, 81920, v7")
    p("v_add_u32 v50, 122880, v7")
    st.mark()
    WB = 144; NB = 8
    ACC = [176, 180]
    def gemm_tile(j, swapped):
        acc = ACC[j & 1]
        va, off0 = {0: ("v29", 0), 1: ("v29", 20480), 2: ("v29", 40960), 3: ("v50", 20480), 4: ("v7", 0), 5: ("v7", 20480)}[j]
        PF = 6
        for s in range(PF):
            p(f"ds_read_b128 v[{WB+4*(s%NB)}:{WB+4*(s%NB)+3}], {va} offset:{off0+1024*s}")
        for s in range(20):
            if s + PF < 20:
                q = s + PF
                p(f"ds_read_b128 v[{WB+4*(q%NB)}:{WB+4*(q%NB)+3}], {va} offset:{off0+1024*q}")
            p(f"s_waitcnt lgkmcnt({min(PF, 19-s)})")
            W = f"v[{WB+4*(s%NB)}:{WB+4*(s%NB)+3}]"; Hh = f"v[{X+4*s}:{X+4*s+3}]"
            A, B = (W, Hh) if swapped else (Hh, W)
            p(f"v_mfma_f32_16x16x32_bf16 v[{acc}:{acc+3}], {A}, {B}, {'0' if s==0 else f'v[{acc}:{acc+3}]'}")
        return acc
    def epi_swapped(j, acc, rs):
        p("s_nop 7")
        for i in range(4):
            p(f"v_fma_f32 v{32+i}, -v24, v{CSR+4*j+i}, v{acc+i}")
        for i in range(4):
            p(f"v_mul_f32 v{32+i}, {rs}, v{32+i}")
        p("v_cvt_pk_bf16_f32 v30, v32, v33")
        p("v_cvt_pk_bf16_f32 v31, v34, v35")
    def sq4(dst, first):
        p("v_lshlrev_b32 v32, 16, v30"); p("v_and_b32 v33, 0xffff0000, v30")
        p("v_lshlrev_b32 v34, 16, v31"); p("v_and_b32 v35, 0xffff0000, v31")
        if first: p(f"v_mul_f32 {dst}, v32, v32")
        else: p(f"v_fma_f32 {dst}, v32, v32, {dst}")
        for r in (33, 34, 35): p(f"v_fma_f32 {dst}, v{r}, v{r}, {dst}")
    def epi_v(acc, cs):
        p("s_nop 7")
        for i in range(4):
            p(f"v_fma_f32 v{32+i}, -v{40+i}, {cs}, v{acc+i}")
        for i in range(4):
            p(f"v_mul_f32 v{32+i}, v{44+i}, v{32+i}")
        p("v_cvt_pk_bf16_f32 v30, v32, v33")
        p("v_cvt_pk_bf16_f32 v31, v34, v35")

    def path(kinds, tag):
        v = VM(p); v.q = list(vm.q)
        n = len(kinds)
        if tag == 'v':
            for j in range(4):
                p(f"v_lshlrev_b32 v10, 4, v6")
                p(f"v_add_u32 v10, {4*j}, v10")
                p(f"ds_bpermute_b32 v{40+j}, v10, v24")
                p(f"ds_bpermute_b32 v{44+j}, v10, v25")
            p("v_lshlrev_b32 v10, 2, v5")
            p("buffer_load_dword v48, v10, s[64:67], s14 offen offset:192"); v.issue("vcs")
            p("buffer_load_dword v49, v10, s[64:67], s14 offen offset:256"); v.issue("vcs")
            p("v_lshlrev_b32 v13, 1, v6")
            p("v_lshrrev_b32 v11, 1, v6")
            p("v_or_b32 v13, v13, v11")
            p("v_and_b32 v13, 3, v13")
            p("v_lshlrev_b32 v13, 2, v13")
            p("s_and_b32 s19, s15, 511")
            p("v_add_u32 v13, s19, v13")
            p("v_lshrrev_b32 v11, 3, v13")
            p("v_xor_b32 v11, v11, v5")
            p("v_lshlrev_b32 v11, 4, v11")
            p("v_and_b32 v13, 4, v13")
            p("v_lshl_add_u32 v11, v13, 1, v11")
            p("v_lshl_add_u32 v11, v5, 10, v11")
            p("v_add_u32 v11, 20480, v11")
        if tag == 'k':
            p("v_and_b32 v39, 511, v14")
        for j, kd_ in enumerate(kinds):
            v.wait(("w", j))
            p("s_barrier")
            if j + 4 < n: wdma(v, j + 4)
            if j == 0: v.wait("cs") if any(t == "cs" for t in v.q) else None
            if kd_ == 'q':
                acc = gemm_tile(j, True)
                epi_swapped(j, acc, "v26")
                p(f"buffer_store_dwordx2 v[30:31], v28, s[52:55], s16 offen offset:{32*j}"); v.issue("st")
            elif kd_ == 'K':
                acc = gemm_tile(j, True)
                epi_swapped(j, acc, "v25")
                p("v_lshlrev_b32 v10, 5, v39")
                p("v_lshl_add_u32 v10, v6, 3, v10")
                p("buffer_store_dwordx2 v[30:31], v10, s[56:59], s18 offen"); v.issue("st")
                sq4("v36", True)
            elif kd_ == 'k':
                acc = gemm_tile(j, True)
                epi_swapped(j, acc, "v25")
                sq4("v36", False)
                p("v_lshlrev_b32 v10, 3, v39")
                p("v_add_u32 v10, 16384, v10")
                p("v_mov_b32 v37, v36")
                p("s_nop 1")
                p("v_permlane16_swap_b32 v36, v37")
                p("v_add_f32 v36, v36, v37")
                p("v_mov_b32 v37, v36")
                p("s_nop 1")
                p("v_permlane32_swap_b32 v36, v37")
                p("v_add_f32 v36, v36, v37")
                for sh in (1, 2, 4, 8):
                    p("s_nop 1")
                    p(f"v_max_f32_dpp v36, v36, v36 row_ror:{sh} row_mask:0xf bank_mask:0xf")
                p(f"v_mov_b32 v38, {WS_KMAX - WS_CS}")
                p("v_cmp_eq_u32 vcc, 0, v6")
                p("s_and_saveexec_b64 s[70:71], vcc")
                p("s_cbranch_execz qkv_end")
                p("buffer_store_dwordx2 v[30:31], v10, s[56:59], s18 offen")
                p("v_cmp_eq_u32 vcc, 0, v1")
                p("s_and_saveexec_b64 s[70:71], vcc")
                p("s_cbranch_execz qkv_end")
                p("buffer_atomic_umax v36, v38, s[64:67], 0 offen")
            elif kd_ == 'V':
                acc = gemm_tile(j, False)
                v.wait("vcs") if any(t == "vcs" for t in v.q) else None
                epi_v(acc, "v48")
                p("buffer_store_dwordx2 v[30:31], v11, s[56:59], s18 offen"); v.issue("st")
            elif kd_ == 'v':
                acc = gemm_tile(j, False)
                epi_v(acc, "v49")
                p("v_add_u32 v11, 16384, v11")
                p("v_cmp_gt_u32 vcc, 4, v5")
                p("s_and_saveexec_b64 s[70:71], vcc")
                p("s_cbranch_execz qkv_end")
                p("buffer_store_dwordx2 v[30:31], v11, s[56:59], s18 offen")
        if tag == 'a':
            st.mark()
            if stamp:
                p("s_lshl_b32 s19, s2, 2"); p("s_add_u32 s19, s19, s3")
            st.dump("s19", "v52", "v53", 3)
        if tag == 'b':
            p("s_cmp_eq_u32 s5, 5")
            p("s_cbranch_scc1 qkv_zs")
            p("v_lshl_add_u32 v10, v6, 4, v15")
            for ks in range(20):
                p(f"buffer_store_dwordx4 v[{X+4*ks}:{X+4*ks+3}], v10, s[60:63], 0 offen offset:{64*ks}")
            p("s_endpgm")
            p("qkv_zs:")
            p("v_mov_b32 v22, 0x5a17"); p(f"v_mov_b32 v23, {WS_KMAX - WS_CS + 16}")
            p("buffer_store_dword v22, v23, s[64:67], 0 offen")
            p("v_lshlrev_b32 v10, 3, v14")
            p("v_mov_b32 v20, 0"); p("v_mov_b32 v21, 0")
            p("buffer_store_dwordx2 v[20:21], v10, s[72:75], 0 offen")
        p("s_endpgm")

    p("s_cmp_eq_u32 s5, 6")
    p("s_cbranch_scc1 qkv_k")
    p("s_cmp_eq_u32 s5, 7")
    p("s_cbranch_scc1 qkv_v")
    p("s_cmp_ge_u32 s5, 4")
    p("s_cbranch_scc1 qkv_b")
    path("qqqqqq", 'a')
    p("qkv_b:")
    path("qqqqq", 'b')
    p("qkv_k:")
    path("qqqKk", 'k')
    p("qkv_v:")
    path("qqqVv", 'v')
    p("qkv_end:")
    p("s_endpgm")
    return name, 216, (NWG, 256, 163840)
```
